```python
import torch

def _softmax(x, axis=-1):
    return torch.softmax(x, dim=axis)
def _gelu(x):
    return torch.nn.functional.gelu(x, approximate="tanh")
def _silu(x):
    return torch.nn.functional.silu(x)
def _sigmoid(x):
    return torch.sigmoid(x)
def _layernorm(x, axis=-1, eps=1e-5):
    m = x.mean(dim=axis, keepdim=True)
    v = x.var(dim=axis, keepdim=True, unbiased=False)
    return (x - m) / torch.sqrt(v + eps)
def _scatter_add(tgt, idx, src, axis=0):
    return tgt.clone().index_add_(axis, idx, src)
def _segment_sum(src, seg, n):
    out = torch.zeros((n,) + src.shape[1:], dtype=src.dtype)
    return out.index_add_(0, seg, src)
def _pad(x, pw):
    flat = tuple(v for pair in reversed(pw) for v in pair)
    return torch.nn.functional.pad(x, flat)

kernel_name = 'concat_heads__gqa_block_cached__gqa_block_cached__decode'

def setup_inputs():

    _w = (lambda a: (lambda t: t.to(torch.bfloat16) if t.is_floating_point() else t)(torch.as_tensor(a)))
    def _A_setup():
        B, Sq, D = 4, 1, 448
        Hq, Hkv, Sk, Dh = 16, 8, 8192, 256
        assert Hq % Hkv == 0, (Hq, Hkv)
        return {
            "x": _w((lambda *s: torch.randn(*s, dtype=torch.bfloat16) * 0.8)(B, Sq, D)),
            "k_cache": _w((lambda *s: torch.randn(*s, dtype=torch.bfloat16) * 0.8)(B, Hkv, Sk, Dh)),
            "v_cache": _w((lambda *s: torch.randn(*s, dtype=torch.bfloat16) * 0.05)(B, Hkv, Sk, Dh)),
            "wq": _w((lambda *s: torch.randn(*s, dtype=torch.bfloat16) * 0.8)(D, Hq * Dh) * (D ** -0.5)),
            "wo": _w((lambda *s: torch.randn(*s, dtype=torch.bfloat16) * 0.05)(Hq * Dh, D) * ((Hq * Dh) ** -0.5)),
        }
    _A_in = _A_setup()

    def _B_setup():
        B, Sq, D = 4, 1, 448
        Hq, Hkv, Sk, Dh = 16, 8, 8192, 256
        assert Hq % Hkv == 0, (Hq, Hkv)
        return {
            "x": _w((lambda *s: torch.randn(*s, dtype=torch.bfloat16) * 0.8)(B, Sq, D)),
            "k_cache": _w((lambda *s: torch.randn(*s, dtype=torch.bfloat16) * 0.8)(B, Hkv, Sk, Dh)),
            "v_cache": _w((lambda *s: torch.randn(*s, dtype=torch.bfloat16) * 0.05)(B, Hkv, Sk, Dh)),
            "wq": _w((lambda *s: torch.randn(*s, dtype=torch.bfloat16) * 0.8)(D, Hq * Dh) * (D ** -0.5)),
            "wo": _w((lambda *s: torch.randn(*s, dtype=torch.bfloat16) * 0.05)(Hq * Dh, D) * ((Hq * Dh) ** -0.5)),
        }
    _B_in = _B_setup()

    return {
        "A_x": _A_in["x"],
        "A_k_cache": _A_in["k_cache"],
        "A_v_cache": _A_in["v_cache"],
        "A_wq": _A_in["wq"],
        "A_wo": _A_in["wo"],
        "B_x": _B_in["x"],
        "B_k_cache": _B_in["k_cache"],
        "B_v_cache": _B_in["v_cache"],
        "B_wq": _B_in["wq"],
        "B_wo": _B_in["wo"],
    }

def reference(A_x, A_k_cache, A_v_cache, A_wq, A_wo, B_x, B_k_cache, B_v_cache, B_wq, B_wo):
    def _A_ref(x, k_cache, v_cache, wq, wo):
        B, Sq, D = x.shape
        Hq, Dh = 16, 256
        Hkv = k_cache.shape[1]
        rep = Hq // Hkv
        q = (lambda x, *d: x.permute(*d))((x @ wq).reshape(B, Sq, Hq, Dh), 0, 2, 1, 3)
        k = (lambda x, n, axis: torch.repeat_interleave(x, n, dim=axis))(k_cache, rep, axis=1)
        v = (lambda x, n, axis: torch.repeat_interleave(x, n, dim=axis))(v_cache, rep, axis=1)
        scores = torch.einsum("bhqd,bhkd->bhqk", q, k) * (Dh ** -0.5)
        p = _softmax(scores, axis=-1)
        o = torch.einsum("bhqk,bhkd->bhqd", p, v)
        return (lambda x, *d: x.permute(*d))(o, 0, 2, 1, 3).reshape(B, Sq, Hq * Dh) @ wo

    def _B_ref(x, k_cache, v_cache, wq, wo):
        B, Sq, D = x.shape
        Hq, Dh = 16, 256
        Hkv = k_cache.shape[1]
        rep = Hq // Hkv
        q = (lambda x, *d: x.permute(*d))((x @ wq).reshape(B, Sq, Hq, Dh), 0, 2, 1, 3)
        k = (lambda x, n, axis: torch.repeat_interleave(x, n, dim=axis))(k_cache, rep, axis=1)
        v = (lambda x, n, axis: torch.repeat_interleave(x, n, dim=axis))(v_cache, rep, axis=1)
        scores = torch.einsum("bhqd,bhkd->bhqk", q, k) * (Dh ** -0.5)
        p = _softmax(scores, axis=-1)
        o = torch.einsum("bhqk,bhkd->bhqd", p, v)
        return (lambda x, *d: x.permute(*d))(o, 0, 2, 1, 3).reshape(B, Sq, Hq * Dh) @ wo

    a = _A_ref(A_x, A_k_cache, A_v_cache, A_wq, A_wo)
    b = _B_ref(B_x, B_k_cache, B_v_cache, B_wq, B_wo)
    return torch.concatenate([a, b], axis=-1)
```

```python
import sys, os, subprocess, struct

NAME="concat_heads__gqa_block_cached__gqa_block_cached__decode"
def f2u(f): return struct.unpack("<I",struct.pack("<f",f))[0]

WS_E    = 0
WS_CNT  = 4096
WS_QG   = 0x10000
WS_PG   = 0x90000
PGS     = 4608
WS_OG   = 0x200000
WS_USED = 0x580000
WS_STAMP= 512<<20
SLOT=8192
RING=4*4*SLOT
AUX=RING
MISC=AUX+28672
L_Q   = MISC
L_TK  = MISC+1024
L_REQ = MISC+1152
L_QF  = MISC+1168
LDS_TOTAL=163840
C_SCALE = 0.09016844005555896
END_TK=0xFFF
SPIN_MAX=400000

S=dict(WG=2, WAVE=3, BR=4, TP=5, MEM=6, C=7,
 X=8, K=10, V=12, WQ=14, WO=16, OUT=18, WS=20, TAG=22, E=23,
 SRDK=24, SRDV=28, SRDA=32, SRDW=36,
 OFF=40, OFF4=41, LB=42, T0=43, T1=44, T2=45, P0=46, P1=47,
 MASK=48, WBASE=64, TKI=65, MBX=66, SPIN=67, TEAM=68, B=69, HKV=70, WL=71,
 EX=72, ACT=74, ST=76, CS=96, T5=97, T6=98, T7=99, NUNIT=100)
def s(n,k=1,o=0):
    b=S[n]+o
    return f"s{b}" if k==1 else f"s[{b}:{b+k-1}]"
V=dict(TID=0, LANE=1, D=2, KA=6, VA=10, M=18, L=19, T=20, O=36, A=44, Q=60, KB=92, KB2=124, VB=156, SS=188, X0=220, QA=116)
def v(n,i=0,k=1):
    b=V[n]+i
    return f"v{b}" if k==1 else f"v[{b}:{b+k-1}]"
def T(i,k=1): return v('T',i,k)
def R(b,k=1): return f"v{b}" if k==1 else f"v[{b}:{b+k-1}]"

class Gen:
    def __init__(self, cfg):
        self.cfg=cfg; self.L=[]; self.uid=0; self.q=[]
    def __call__(self,t):
        for l in t.split("\n"):
            l=l.strip()
            if l: self.L.append(("" if l.endswith(":") else "  ")+l)
    def lab(self,b="L"):
        self.uid+=1; return f"{b}_{self.kn}_{self.uid}"
    def c(self,t): self.L.append("  ; "+t)
    def vm_issue(self,tag,n): self.q.append([tag,n])
    def vm_wait(self,tag):
        idx=max(i for i,(t,n) in enumerate(self.q) if t==tag)
        n=sum(x[1] for x in self.q[idx+1:])
        assert n<=63
        self(f"s_waitcnt vmcnt({n})")
        self.q=self.q[idx+1:]
    def stamp(self,i):
        if self.cfg.get("stamps"):
            self(f"s_memrealtime s[{S['ST']+2*i}:{S['ST']+2*i+1}]")

def srd(g, name, ptr, size, off=None):
    if off is None:
        g(f"s_mov_b32 {s(name,1,0)}, {s(ptr,1,0)}\ns_mov_b32 {s(name,1,1)}, {s(ptr,1,1)}")
    else:
        g(f"s_add_u32 {s(name,1,0)}, {s(ptr,1,0)}, {off}\ns_addc_u32 {s(name,1,1)}, {s(ptr,1,1)}, 0")
    g(f"s_mov_b32 {s(name,1,2)}, {size}\ns_mov_b32 {s(name,1,3)}, 0x20000")

def prologue(g):
    g(f"s_cmp_ge_u32 s2, 256\ns_cbranch_scc1 L_end_{g.kn}")
    g.stamp(0)
    pm=g.cfg.get('perm',0)
    if pm:
        g(f"s_bfe_u32 {s('T0')}, s2, 0x50002\ns_and_b32 {s('T1')}, s2, 3\ns_and_b32 {s('T2')}, s2, 128")
        if pm in (1,3): g(f"s_add_u32 {s('T1')}, {s('T1')}, {s('T0')}\ns_and_b32 {s('T1')}, {s('T1')}, 3")
        if pm in (4,): g(f"s_lshr_b32 {s('T5')}, {s('T0')}, 1\ns_add_u32 {s('T1')}, {s('T1')}, {s('T5')}\ns_and_b32 {s('T1')}, {s('T1')}, 3")
        if pm in (2,3,4): g(f"s_lshr_b32 {s('T5')}, {s('T0')}, 1\ns_and_b32 {s('T0')}, {s('T0')}, 1\ns_lshl_b32 {s('T0')}, {s('T0')}, 4\ns_or_b32 {s('T0')}, {s('T0')}, {s('T5')}")
        if pm==5:
            g(f"s_lshr_b32 {s('T5')}, {s('T0')}, 1\ns_and_b32 {s('T0')}, {s('T0')}, 1\ns_lshr_b32 {s('T2')}, {s('T2')}, 3\ns_or_b32 {s('T5')}, {s('T5')}, {s('T2')}\ns_lshl_b32 {s('T2')}, {s('T0')}, 7\ns_mov_b32 {s('T0')}, {s('T5')}")
        g(f"s_lshl_b32 {s('T0')}, {s('T0')}, 2\ns_or_b32 {s('T0')}, {s('T0')}, {s('T1')}\ns_or_b32 s2, {s('T0')}, {s('T2')}")
    g(f"s_lshr_b32 {s('BR')}, s2, 7\ns_mul_i32 {s('T0')}, {s('BR')}, 40")
    g(f"s_add_u32 s46, s0, {s('T0')}\ns_addc_u32 s47, s1, 0")
    g("s_load_dwordx8 s[8:15], s[46:47], 0\ns_load_dwordx2 s[16:17], s[46:47], 32")
    g("s_load_dwordx2 s[18:19], s[0:1], 80\ns_load_dwordx2 s[20:21], s[0:1], 96")
    g(f"v_and_b32 {v('LANE')}, 63, v0\nv_lshrrev_b32 {T(0)}, 6, v0")
    g(f"s_lshr_b32 {s('TEAM')}, s2, 2\ns_and_b32 {s('TP')}, {s('TEAM')}, 31")
    g(f"v_readfirstlane_b32 {s('WAVE')}, {T(0)}")
    g(f"s_and_b32 {s('MEM')}, s2, 3\ns_and_b32 {s('WL')}, s2, 127")
    g(f"s_lshr_b32 {s('B')}, {s('TP')}, 3\ns_and_b32 {s('HKV')}, {s('TP')}, 7")
    g(f"s_lshl_b32 {s('C')}, {s('MEM')}, 2\ns_add_u32 {s('C')}, {s('C')}, {s('B')}")
    g(f"s_mov_b32 {s('CS')}, {f2u(C_SCALE):#x}")
    g("s_waitcnt lgkmcnt(0)")
    g(f"s_lshl_b32 {s('T0')}, {s('BR')}, 8")
    g(f"s_add_u32 s46, {s('WS')}, {s('T0')}\ns_addc_u32 s47, {s('WS',1,1)}, 0")
    g(f"s_load_dword {s('E')}, s[46:47], {WS_E}")
    srd(g,'SRDW','WS', WS_USED if (not g.cfg.get('stamps') or g.cfg.get('dbgst')) else 0x30000000)

def get_tag(g):
    g("s_waitcnt lgkmcnt(0)")
    g(f"s_mul_i32 {s('TAG')}, {s('E')}, 0x9E3779B1\ns_add_u32 {s('TAG')}, {s('TAG')}, 0x7F4A7C15")

def issue_wq_dma_v2(g):
    g.c("wq slice DMA (7 x 1KB per wave): 224 rows x 128 B")
    srd(g,'SRDA','WQ',448*8192)
    L=v('LANE')
    g(f"v_lshrrev_b32 {T(0)}, 3, {L}\nv_lshlrev_b32 {T(0)}, 13, {T(0)}")
    g(f"v_and_b32 {T(1)}, 7, {L}\nv_lshl_add_u32 {T(0)}, {T(1)}, 4, {T(0)}")
    g(f"s_lshl_b32 {s('T0')}, {s('HKV')}, 10\ns_lshr_b32 {s('T1')}, {s('C')}, 1\ns_lshl_b32 {s('T1')}, {s('T1')}, 7\ns_add_u32 {s('T0')}, {s('T0')}, {s('T1')}")
    g(f"s_and_b32 {s('T1')}, {s('C')}, 1\ns_mul_i32 {s('T1')}, {s('T1')}, {224*8192}\ns_add_u32 {s('T0')}, {s('T0')}, {s('T1')}")
    g(f"s_mul_i32 {s('T1')}, {s('WAVE')}, {56*8192}\ns_add_u32 {s('T0')}, {s('T0')}, {s('T1')}")
    g(f"s_mul_i32 {s('T1')}, {s('WAVE')}, {7*1024}\ns_add_u32 {s('T1')}, {s('T1')}, {AUX}")
    for n in range(7):
        g(f"s_mov_b32 m0, {s('T1')}\ns_add_u32 {s('T1')}, {s('T1')}, 1024")
        g(f"buffer_load_dwordx4 {T(0)}, {s('SRDA',4)}, {s('T0')} offen {g.cfg.get('wqpol','nt')} lds")
        g(f"s_add_u32 {s('T0')}, {s('T0')}, 65536")
    g.vm_issue('wq',7)

def stream_setup1(g):
    g.c("stream setup 1")
    g(f"s_lshl_b32 {s('T0')}, {s('TP')}, 22")
    srd(g,'SRDK','K',4<<20,s('T0')); srd(g,'SRDV','V',4<<20,s('T0'))
    L=v('LANE')
    g(f"v_lshrrev_b32 {T(2)}, 5, {L}\nv_and_b32 {T(3)}, 31, {L}")
    for t in range(4):
        g(f"v_add_u32 {T(4)}, {2*t}, {T(2)}\nv_lshlrev_b32 {T(4)}, 1, {T(4)}\nv_xor_b32 {T(4)}, {T(4)}, {T(3)}")
        g(f"v_lshlrev_b32 {T(4)}, 4, {T(4)}\nv_lshl_add_u32 {v('D',t)}, {T(2)}, 9, {T(4)}")
    g(f"s_lshl_b32 {s('LB')}, {s('WAVE')}, 15")
    NS=g.cfg['NS']
    if g.cfg.get('lay'):
        g(f"s_lshl_b32 {s('WBASE')}, {s('MEM')}, 7\ns_add_u32 {s('WBASE')}, {s('WBASE')}, {s('WAVE')}\ns_lshl_b32 {s('WBASE')}, {s('WBASE')}, 13")
    else:
        g(f"s_mul_i32 {s('WBASE')}, {s('MEM')}, {NS*4}\ns_add_u32 {s('WBASE')}, {s('WBASE')}, {s('WAVE')}\ns_lshl_b32 {s('WBASE')}, {s('WBASE')}, 13")
    if g.cfg.get('rot'):
        g(f"s_mul_i32 {s('T7')}, s2, {g.cfg['rot']}\ns_and_b32 {s('T7')}, {s('T7')}, 0xfff")
        g(f"s_mul_i32 {s('T2')}, {s('T7')}, {(65536+NS-1)//NS}\ns_lshr_b32 {s('T2')}, {s('T2')}, 16\ns_mul_i32 {s('T2')}, {s('T2')}, {NS}\ns_sub_i32 {s('T7')}, {s('T7')}, {s('T2')}")
        g(f"s_cmp_lt_i32 {s('T7')}, 0\ns_cselect_b32 {s('T2')}, {NS}, 0\ns_add_u32 {s('T7')}, {s('T7')}, {s('T2')}\ns_lshl_b32 {s('T7')}, {s('T7')}, 15")

def stream_setup2(g):
    g.c("stream setup 2")
    L=v('LANE')
    g(f"v_and_b32 {T(0)}, 15, {L}\nv_lshrrev_b32 {T(1)}, 4, {L}")
    g(f"v_and_b32 {T(2)}, 1, {T(0)}\nv_lshlrev_b32 {T(2)}, 1, {T(2)}\nv_xor_b32 {T(2)}, {T(2)}, {T(1)}\nv_lshlrev_b32 {T(2)}, 4, {T(2)}")
    g(f"v_bfe_u32 {T(3)}, {T(0)}, 1, 2\nv_lshlrev_b32 {T(3)}, 6, {T(3)}")
    g(f"v_lshl_add_u32 {T(2)}, {T(0)}, 9, {T(2)}\nv_add_u32 {T(2)}, {T(2)}, {T(3)}")
    for sg in range(4):
        g(f"v_xor_b32 {v('KA',sg)}, {sg*64}, {T(2)}\nv_add_u32 {v('KA',sg)}, {s('LB')}, {v('KA',sg)}")
    g(f"v_lshrrev_b32 {T(2)}, 2, {T(0)}\nv_and_b32 {T(3)}, 3, {T(0)}\nv_lshl_add_u32 {T(2)}, {T(1)}, 2, {T(2)}")
    g(f"v_and_b32 {T(4)}, 7, {T(2)}\nv_lshlrev_b32 {T(4)}, 5, {T(4)}\nv_lshl_add_u32 {T(4)}, {T(2)}, 9, {T(4)}\nv_lshl_add_u32 {T(4)}, {T(3)}, 3, {T(4)}")
    for d in range(8):
        g(f"v_xor_b32 {v('VA',d)}, {d*32}, {T(4)}\nv_add_u32 {v('VA',d)}, {s('LB')}, {v('VA',d)}")
    for t8 in range(8):
        m=(3<<(2*t8))*0x00010001
        g(f"s_mov_b32 {s('MASK',1,2*t8)}, {m:#x}\ns_mov_b32 {s('MASK',1,2*t8+1)}, {m:#x}")
    g(f"v_mov_b32 {v('M')}, {f2u(-1e30):#x}\nv_mov_b32 {v('L')}, 0")
    for i in range(8): g(f"v_mov_b32 {v('O',i)}, 0")

def dma_list(slot, kv, pol):
    sr=s('SRDK',4) if kv==0 else s('SRDV',4)
    out=[]
    for t in range(8):
        pre=""
        if t%4==0: pre=f"s_add_u32 m0, {s('LB')}, {slot*SLOT+(t//4)*4096}\ns_nop 0\n"
        out.append(pre+f"buffer_load_dwordx4 {v('D',t%4)}, {sr}, {s('OFF') if t<4 else s('OFF4')} offen offset:{(t%4)*1024} {pol} lds")
    return out
def set_off_static(g, unit):
    if g.cfg.get('rot'):
        NS=g.cfg['NS']
        g(f"s_add_u32 {s('OFF')}, {s('T7')}, {unit*4*8192}\ns_sub_u32 {s('OFF4')}, {s('OFF')}, {NS*32768}\ns_cmp_ge_u32 {s('OFF')}, {NS*32768}\ns_cselect_b32 {s('OFF')}, {s('OFF4')}, {s('OFF')}")
        g(f"s_add_u32 {s('OFF')}, {s('OFF')}, {s('WBASE')}\ns_add_u32 {s('OFF4')}, {s('OFF')}, 4096")
        return
    g(f"s_add_u32 {s('OFF')}, {s('WBASE')}, {unit*4*8192}\ns_add_u32 {s('OFF4')}, {s('OFF')}, 4096")
def read_k(g, slot, dst):
    for st in range(8):
        g(f"ds_read_b128 {v(dst,4*st,4)}, {v('KA',st&3)} offset:{slot*SLOT+(st>>2)*256}")
def qk_list(src, sidx):
    return [f"v_mfma_f32_16x16x32_bf16 {v('SS',4*sidx,4)}, {v(src,4*st,4)}, {v('Q',4*st,4)}, {'0' if st==0 else v('SS',4*sidx,4)}" for st in range(8)]
def interleave(g,a,b):
    for i in range(max(len(a),len(b))):
        if i<len(a): g(a[i])
        if i<len(b): g(b[i])
def xlane(g, reg, op, t0, t1):
    for sw in ("v_permlane16_swap_b32","v_permlane32_swap_b32"):
        g(f"v_mov_b32 {t0}, {reg}\nv_mov_b32 {t1}, {reg}\ns_nop 1\n{sw} {t0}, {t1}\ns_nop 1\n{op} {reg}, {t0}, {t1}")
def softmax(g, nt):
    n=4*nt
    regs=[v('SS',i) for i in range(n)]
    g("s_nop 7")
    g(f"v_max3_f32 {T(0)}, {regs[0]}, {regs[1]}, {regs[2]}")
    i=3
    while i<n:
        if i+1<n: g(f"v_max3_f32 {T(0)}, {T(0)}, {regs[i]}, {regs[i+1]}"); i+=2
        else: g(f"v_max_f32 {T(0)}, {T(0)}, {regs[i]}"); i+=1
    xlane(g,T(0),"v_max_f32",T(1),T(2))
    g(f"v_mul_f32 {T(0)}, {s('CS')}, {T(0)}\nv_max_f32 {T(0)}, {T(0)}, {v('M')}")
    g(f"v_sub_f32 {T(1)}, {v('M')}, {T(0)}\nv_exp_f32 {T(1)}, {T(1)}\nv_mov_b32 {v('M')}, {T(0)}")
    for i in range(n): g(f"v_fma_f32 {regs[i]}, {regs[i]}, {s('CS')}, -{T(0)}")
    for i in range(n): g(f"v_exp_f32 {regs[i]}, {regs[i]}")
    g(f"v_mul_f32 {v('L')}, {v('L')}, {T(1)}")
    g(f"v_add_f32 {T(5)}, {regs[0]}, {regs[1]}")
    for i in range(2,n): g(f"v_add_f32 {T(5)}, {T(5)}, {regs[i]}")
    g(f"v_add_f32 {v('L')}, {v('L')}, {T(5)}")
    for i in range(8): g(f"v_mul_f32 {v('O',i)}, {v('O',i)}, {T(1)}")
    for t in range(nt):
        g(f"v_cvt_pk_bf16_f32 {v('SS',4*t)}, {regs[4*t]}, {regs[4*t+1]}")
        g(f"v_cvt_pk_bf16_f32 {v('SS',4*t+1)}, {regs[4*t+2]}, {regs[4*t+3]}")
def read_v(g, slot):
    for db in range(16):
        g(f"ds_read_b64_tr_b16 {v('VB',2*db,2)}, {v('VA',db&7)} offset:{slot*SLOT+(db>>3)*256}")
def mask_p(g, sidx):
    for t8 in range(8):
        for r in range(2):
            g(f"v_cndmask_b32 {v('A',2*t8+r)}, 0, {v('SS',4*sidx+r)}, {s('MASK',2,2*t8)}")
def pv_list():
    return [f"v_mfma_f32_16x16x16_bf16 {v('O',4*h,4)}, {v('VB',2*(8*h+t8),2)}, {v('A',2*t8,2)}, {v('O',4*h,4)}" for t8 in range(8) for h in range(2)]

def stream_waves(g, fused_q):
    cfg=g.cfg; NS=cfg['NS']; B=cfg['B']; pol=cfg.get('pol','nt'); Dm=cfg.get('D',1); D=cfg.get('Dh',Dm)
    cur=[D]
    NSB=NS-2
    assert NSB%B==0
    g.q=[]
    kfirst=cfg.get('kfirst',0)
    if fused_q and not kfirst: issue_wq_dma(g)
    stream_setup1(g)
    seq=[]
    for b in range(NSB//B):
        for kv in (0,1):
            for i in range(B): seq.append((kv,b*B+i,i,B))
    for n in (NSB,NSB+1):
        for kv in (0,1): seq.append((kv,n,0,1))
    def pace():
        n=8*(cur[0]-1)
        g(f"s_waitcnt vmcnt({n})")
        keep=[]; acc=0
        for x in reversed(g.q):
            if acc>=n: break
            keep.append(x); acc+=x[1]
        g.q=list(reversed(keep))
    def landed(tag): return all(t!=tag for t,_ in g.q)
    def issue(i, paced=True):
        if paced: pace()
        set_off_static(g,seq[i][1]); g.vm_issue(('t',i),8)
        return dma_list(i%4,seq[i][0],pol)
    for i in range(D):
        for x in issue(i,False): g(x)
    if fused_q and kfirst: issue_wq_dma(g)
    stream_setup2(g)
    if fused_q: g.vm_wait('wq')
    g("s_barrier")
    for i in range(D,4):
        for x in issue(i): g(x)
    get_tag(g)
    PD=min(cfg.get('predrain',2),B)
    bufs=['KB','KB2']
    for i in range(PD):
        if not landed(('t',i)): g.vm_wait(('t',i))
        read_k(g,i%4,bufs[i]); g("s_waitcnt lgkmcnt(0)")
        for x in issue(i+4): g(x)
    g.c("wait for q in LDS")
    lp=g.lab("Lq")
    g(f"v_mov_b32 {T(0)}, {L_QF}\ns_mov_b32 {s('SPIN')}, 0")
    g(f"{lp}:\nds_read_b32 {T(1)}, {T(0)}\ns_waitcnt lgkmcnt(0)\nv_readfirstlane_b32 {s('T0')}, {T(1)}")
    g(f"s_add_u32 {s('SPIN')}, {s('SPIN')}, 1\ns_cmp_gt_u32 {s('SPIN')}, {SPIN_MAX*8}\ns_cbranch_scc1 {lp}_x")
    g(f"s_cmp_eq_u32 {s('T0')}, 0\ns_cbranch_scc0 {lp}_x\ns_sleep 1\ns_branch {lp}\n{lp}_x:")
    g.stamp(1)
    cur[0]=Dm
    L=v('LANE')
    g(f"v_and_b32 {T(0)}, 1, {L}\nv_lshlrev_b32 {T(0)}, 9, {T(0)}\nv_lshrrev_b32 {T(1)}, 4, {L}\nv_lshl_add_u32 {T(0)}, {T(1)}, 4, {T(0)}\nv_add_u32 {T(0)}, {L_Q}, {T(0)}")
    for st in range(8): g(f"ds_read_b128 {v('Q',4*st,4)}, {T(0)} offset:{st*64}")
    g("s_waitcnt lgkmcnt(0)")
    for i in range(PD):
        for x in qk_list(bufs[i],i): g(x)
    if PD==B: softmax(g,B)
    def do_tile(kv, slot, ib, bb, dlist, pacefn):
        if kv==0:
            read_k(g,slot,'KB'); g("s_waitcnt lgkmcnt(0)")
            if dlist: pacefn()
            for x in dlist: g(x)
            for x in qk_list('KB',ib): g(x)
            if ib==bb-1: softmax(g,bb)
        else:
            read_v(g,slot); mask_p(g,ib); g("s_waitcnt lgkmcnt(0)")
            if dlist: pacefn()
            for x in dlist: g(x)
            for x in pv_list(): g(x)
    for i in range(PD,len(seq)-4):
        kv,u,ib,bb=seq[i]
        if not landed(('t',i)): g.vm_wait(('t',i))
        set_off_static(g,seq[i+4][1])
        def pf(i=i):
            pace(); g.vm_issue(('t',i+4),8)
        do_tile(kv,i%4,ib,bb,dma_list(i%4,seq[i+4][0],pol),pf)
    g.stamp(2)
    g.c("pool loop")
    g(f"s_mov_b32 {s('TKI')}, 0\ns_lshl_b32 {s('MBX')}, {s('WAVE')}, 5\ns_add_u32 {s('MBX')}, {s('MBX')}, {L_TK}")
    g(f"s_mov_b32 {s('NUNIT')}, {NS}")
    kn=g.kn
    DP=cfg.get('DP',Dm)
    pw=lambda: g(f"s_waitcnt vmcnt({8*(DP-1)})")
    g(f"L_pool0_{kn}:")
    for par in (0,1):
        lp=g.lab("Ltk")
        g(f"s_and_b32 {s('T0')}, {s('TKI')}, 7\ns_lshl_b32 {s('T0')}, {s('T0')}, 2\ns_add_u32 {s('T0')}, {s('T0')}, {s('MBX')}\nv_mov_b32 {T(6)}, {s('T0')}")
        g(f"s_add_u32 {s('TKI')}, {s('TKI')}, 1\ns_mov_b32 {s('SPIN')}, 0")
        g(f"{lp}:\nds_read_b32 {T(7)}, {T(6)}\ns_waitcnt lgkmcnt(0)\nv_readfirstlane_b32 {s('T0')}, {T(7)}")
        g(f"s_add_u32 {s('SPIN')}, {s('SPIN')}, 1\ns_cmp_gt_u32 {s('SPIN')}, {SPIN_MAX*8}\ns_cbranch_scc1 L_tail{par}_{kn}")
        g(f"s_lshr_b32 {s('T1')}, {s('T0')}, 12\ns_cmp_eq_u32 {s('T1')}, {s('TKI')}\ns_cbranch_scc0 {lp}")
        g(f"s_lshl_b32 {s('T1')}, {s('WAVE')}, 2\ns_add_u32 {s('T1')}, {s('T1')}, {L_REQ}\nv_mov_b32 {T(6)}, {s('T1')}\nv_mov_b32 {T(7)}, {s('TKI')}\nds_write_b32 {T(6)}, {T(7)}")
        g(f"s_and_b32 {s('T0')}, {s('T0')}, 0xfff\ns_cmp_eq_u32 {s('T0')}, {END_TK}\ns_cbranch_scc1 L_tail{par}_{kn}")
        lay=cfg.get('lay')
        PP=(32-NS)*4
        if lay==1:
            g(f"s_mul_i32 {s('T1')}, {s('T0')}, {(65536+PP-1)//PP}\ns_lshr_b32 {s('T1')}, {s('T1')}, 16\ns_mul_i32 {s('T2')}, {s('T1')}, {PP}\ns_sub_u32 {s('T0')}, {s('T0')}, {s('T2')}")
            g(f"s_lshl_b32 {s('T1')}, {s('T1')}, 7\ns_add_u32 {s('T0')}, {s('T0')}, {s('T1')}\ns_add_u32 {s('T0')}, {s('T0')}, {NS*4}\ns_lshl_b32 {s('OFF')}, {s('T0')}, 13\ns_add_u32 {s('OFF4')}, {s('OFF')}, 4096")
        elif lay==2:
            g(f"s_and_b32 {s('T1')}, {s('T0')}, 3\ns_lshr_b32 {s('T0')}, {s('T0')}, 2")
            g(f"s_lshl_b32 {s('T1')}, {s('T1')}, 7\ns_add_u32 {s('T0')}, {s('T0')}, {s('T1')}\ns_add_u32 {s('T0')}, {s('T0')}, {NS*4}\ns_lshl_b32 {s('OFF')}, {s('T0')}, 13\ns_add_u32 {s('OFF4')}, {s('OFF')}, 4096")
        else:
            g(f"s_add_u32 {s('T0')}, {s('T0')}, {NS*16}\ns_lshl_b32 {s('OFF')}, {s('T0')}, 13\ns_add_u32 {s('OFF4')}, {s('OFF')}, 4096")
        g(f"s_add_u32 {s('NUNIT')}, {s('NUNIT')}, 1")
        g("s_waitcnt vmcnt(24)")
        do_tile(0,2*par,0,1,dma_list(2*par,0,pol),pw)
        g("s_waitcnt vmcnt(24)")
        do_tile(1,2*par+1,0,1,dma_list(2*par+1,1,pol),pw)
    g(f"s_branch L_pool0_{kn}")
    for par in (0,1):
        g(f"L_tail{par}_{kn}:")
        g("s_waitcnt vmcnt(24)"); do_tile(0,2*par,0,1,[],None)
        g("s_waitcnt vmcnt(16)"); do_tile(1,2*par+1,0,1,[],None)
        g("s_waitcnt vmcnt(8)");  do_tile(0,2*(1-par),0,1,[],None)
        g("s_waitcnt vmcnt(0)");  do_tile(1,2*(1-par)+1,0,1,[],None)
        if par==0: g(f"s_branch L_sdone_{kn}")
    g(f"L_sdone_{kn}:")
    g.stamp(3)
    g.c("wave partial -> LDS")
    xlane(g,v('L'),"v_add_f32",T(1),T(2))
    L=v('LANE')
    g(f"v_lshlrev_b32 {T(0)}, 4, {L}\nv_add_u32 {T(0)}, {s('LB')}, {T(0)}")
    g(f"v_and_b32 {T(1)}, 1, {L}\nv_lshlrev_b32 {T(1)}, 3, {T(1)}\nv_add_u32 {T(1)}, {s('LB')}, {T(1)}")
    g(f"v_mov_b32 {T(2)}, {v('M')}\nv_mov_b32 {T(3)}, {v('L')}")
    g("s_nop 4")
    g(f"ds_write_b128 {T(0)}, {v('O',0,4)}\nds_write_b128 {T(0)}, {v('O',4,4)} offset:1024\nds_write_b64 {T(1)}, {T(2,2)} offset:2048")
    g("s_waitcnt lgkmcnt(0)\ns_barrier")
    X=V['X0']; KB=V['KB']
    g(f"s_and_b32 {s('T0')}, {s('WAVE')}, 1\ns_lshl_b32 {s('T0')}, {s('T0')}, 10\ns_lshr_b32 {s('T1')}, {s('WAVE')}, 1")
    g(f"v_bfe_u32 {T(0)}, {L}, 1, 2\nv_lshlrev_b32 {T(0)}, 8, {T(0)}\nv_lshrrev_b32 {T(1)}, 3, {L}\nv_lshl_add_u32 {T(0)}, {T(1)}, 5, {T(0)}")
    g(f"v_and_b32 {T(1)}, 1, {L}\nv_lshl_add_u32 {T(0)}, {T(1)}, 3, {T(0)}")
    g(f"s_lshl_b32 {s('T2')}, {s('T1')}, 4\ns_add_u32 {s('T2')}, {s('T2')}, {s('T0')}\nv_add_u32 {T(0)}, {s('T2')}, {T(0)}\nv_add_u32 {T(2)}, 65536, {T(0)}")
    g(f"s_lshl_b32 {s('T2')}, {s('T1')}, 3\nv_mov_b32 {T(1)}, {s('T2')}\nv_add_u32 {T(3)}, 65536, {T(1)}")
    for w in range(4):
        g(f"ds_read_b64 {R(KB+2*w,2)}, {T(0) if w<2 else T(2)} offset:{(w&1)*32768}")
        g(f"ds_read_b64 {R(KB+8+2*w,2)}, {T(1) if w<2 else T(3)} offset:{(w&1)*32768+2048}")
    g(f"v_lshlrev_b32 {T(4)}, 4, {L}")
    g(f"s_mul_i32 {s('T5')}, s2, {PGS}\ns_add_u32 {s('T5')}, {s('T5')}, {WS_PG}\ns_lshl_b32 {s('T1')}, {s('T1')}, 11\ns_add_u32 {s('T1')}, {s('T1')}, {s('T0')}\ns_add_u32 {s('T1')}, {s('T1')}, {s('T5')}")
    g("s_waitcnt lgkmcnt(0)")
    m=[R(KB+8+2*w) for w in range(4)]; l=[R(KB+9+2*w) for w in range(4)]
    mx=R(X); lt=R(X+2)
    g(f"v_max3_f32 {mx}, {m[0]}, {m[1]}, {m[2]}\nv_max_f32 {mx}, {mx}, {m[3]}")
    for w in range(4): g(f"v_sub_f32 {m[w]}, {m[w]}, {mx}")
    for w in range(4): g(f"v_exp_f32 {m[w]}, {m[w]}")
    g(f"v_mov_b32 {R(X+5)}, {s('TAG')}\nv_mov_b32 {R(X+7)}, {s('TAG')}")
    for r in range(2):
        o=R(X+4+2*r)
        g(f"v_mul_f32 {o}, {m[0]}, {R(KB+r)}")
        for w in range(1,4): g(f"v_fma_f32 {o}, {m[w]}, {R(KB+2*w+r)}, {o}")
    g(f"buffer_store_dwordx4 {R(X+4,4)}, {T(4)}, {s('SRDW',4)}, {s('T1')} offen {g.cfg.get('stf','sc1')}")
    l2=g.lab("Lnost")
    g(f"s_and_b32 {s('T0')}, {s('WAVE')}, 1\ns_cmp_lg_u32 {s('T0')}, 0\ns_cbranch_scc1 {l2}")
    g(f"v_mul_f32 {lt}, {m[0]}, {l[0]}")
    for w in range(1,4): g(f"v_fma_f32 {lt}, {m[w]}, {l[w]}, {lt}")
    g(f"v_mov_b32 {R(X+1)}, {s('TAG')}\nv_mov_b32 {R(X+3)}, {s('TAG')}\nv_mov_b32 {T(3)}, 0")
    g(f"s_lshl_b32 {s('T0')}, {s('WAVE')}, 3\ns_add_u32 {s('T5')}, {s('T5')}, {s('T0')}\ns_add_u32 {s('T5')}, {s('T5')}, 4096\ns_mov_b64 {s('EX',2)}, exec\ns_mov_b64 exec, 1")
    g(f"buffer_store_dwordx4 {R(X,4)}, {T(3)}, {s('SRDW',4)}, {s('T5')} offen {g.cfg.get('stf','sc1')}")
    g(f"s_mov_b64 exec, {s('EX',2)}")
    g(f"{l2}:")
    g.stamp(6)

def hop1_gather(g):
    g.c("hop1 gather")
    L=v('LANE'); X=V['X0']; KB=V['KB']; VB=V['VB']
    g(f"v_lshrrev_b32 {T(0)}, 4, {L}\nv_and_b32 {T(1)}, 15, {L}")
    g(f"v_and_b32 {T(3)}, 3, {T(1)}\nv_lshrrev_b32 {T(4)}, 2, {T(1)}")
    g(f"v_lshlrev_b32 {T(3)}, 5, {T(3)}\nv_add_u32 {T(3)}, {T(3)}, {T(4)}\nv_mul_u32_u24 {T(3)}, {PGS}, {T(3)}")
    g(f"v_mov_b32 {T(5)}, {T(3)}\nv_lshl_add_u32 {T(3)}, {T(0)}, 6, {T(3)}")
    g(f"s_lshl_b32 {s('T0')}, {s('BR')}, 5\ns_add_u32 {s('T0')}, {s('T0')}, {s('HKV')}\ns_mul_i32 {s('T0')}, {s('T0')}, {4*PGS}\ns_add_u32 {s('T0')}, {s('T0')}, {WS_PG}")
    g(f"s_lshl_b32 {s('T1')}, {s('C')}, 8\ns_add_u32 {s('T1')}, {s('T1')}, {s('T0')}")
    g(f"s_lshr_b32 {s('T2')}, {s('C')}, 3\ns_lshl_b32 {s('T2')}, {s('T2')}, 4\ns_add_u32 {s('T2')}, {s('T2')}, {s('T0')}\ns_add_u32 {s('T2')}, {s('T2')}, 4096")
    lp=g.lab("Lh1")
    if g.cfg.get('h1delay'): g(f"s_sleep {g.cfg['h1delay']}")
    g(f"s_mov_b32 {s('SPIN')}, 0")
    g(f"{lp}:")
    for n in range(4):
        g(f"buffer_load_dwordx4 {R(KB+4*n,4)}, {T(3)}, {s('SRDW',4)}, {s('T1')} offen offset:{16*n} {g.cfg.get('ldf','sc1')}")
    g(f"buffer_load_dwordx4 {R(KB+16,4)}, {T(5)}, {s('SRDW',4)}, {s('T2')} offen {g.cfg.get('ldf','sc1')}")
    g("s_waitcnt vmcnt(0)")
    g(f"v_xor_b32 {T(6)}, {s('TAG')}, {R(KB+1)}")
    for n in range(1,10):
        g(f"v_xor_b32 {T(7)}, {s('TAG')}, {R(KB+1+2*n)}\nv_or_b32 {T(6)}, {T(6)}, {T(7)}")
    g(f"v_cmp_ne_u32 vcc, 0, {T(6)}\ns_add_u32 {s('SPIN')}, {s('SPIN')}, 1\ns_cmp_gt_u32 {s('SPIN')}, {SPIN_MAX}\ns_cbranch_scc1 {lp}_x")
    g(f"s_cbranch_vccz {lp}_x\ns_sleep {g.cfg.get('h1sleep',2)}\ns_branch {lp}\n{lp}_x:")
    g.stamp(5)
    if g.cfg.get('stamps'): g(f"s_waitcnt lgkmcnt(0)\ns_mov_b32 s{S['ST']+16}, {s('SPIN')}\ns_mov_b32 s{S['ST']+17}, 0")
    M=R(KB+16); Lr=R(KB+18)
    def ror_red(reg,op,t):
        for n in (8,4):
            g(f"s_nop 1\nv_mov_b32_dpp {t}, {reg} row_ror:{n} row_mask:0xf bank_mask:0xf\n{op} {reg}, {reg}, {t}")
    g(f"v_mov_b32 {T(6)}, {M}")
    ror_red(T(6),"v_max_f32",T(7))
    g(f"v_sub_f32 {T(6)}, {M}, {T(6)}\nv_exp_f32 {T(6)}, {T(6)}\ns_nop 0\nv_mul_f32 {T(8)}, {T(6)}, {Lr}")
    ror_red(T(8),"v_add_f32",T(7))
    g(f"v_rcp_f32 {T(8)}, {T(8)}\ns_nop 0\nv_mul_f32 {T(6)}, {T(6)}, {T(8)}")
    for e in range(8): g(f"v_mul_f32 {R(KB+2*e)}, {R(KB+2*e)}, {T(6)}")
    for n in (8,4):
        g("s_nop 1")
        for e in range(8): g(f"v_mov_b32_dpp {R(VB+e)}, {R(KB+2*e)} row_ror:{n} row_mask:0xf bank_mask:0xf")
        for e in range(8): g(f"v_add_f32 {R(KB+2*e)}, {R(KB+2*e)}, {R(VB+e)}")
    for e in range(4): g(f"v_cvt_pk_bf16_f32 {R(X+e)}, {R(KB+4*e)}, {R(KB+4*e+2)}")
    g(f"v_lshlrev_b32 {T(0)}, 4, {L}\nv_add_u32 {T(0)}, {L_Q}, {T(0)}\nds_write_b128 {T(0)}, {R(X,4)}")
    g("s_waitcnt lgkmcnt(0)\ns_barrier")

def hop1_proj(g):
    g.c("hop1 projection")
    L=v('LANE'); X=V['X0']; Q=V['Q']; SS=V['SS']; A0=V['A']
    g(f"v_lshrrev_b32 {T(0)}, 4, {L}\nv_and_b32 {T(1)}, 15, {L}\nv_lshrrev_b32 {T(2)}, 2, {T(1)}\nv_and_b32 {T(3)}, 3, {T(1)}")
    g(f"v_lshl_add_u32 {T(2)}, {T(0)}, 3, {T(2)}\nv_mul_u32_u24 {T(2)}, 896, {T(2)}\nv_lshl_add_u32 {T(2)}, {T(3)}, 3, {T(2)}")
    g(f"s_mul_i32 {s('T0')}, {s('WAVE')}, {7*32}\ns_add_u32 {s('T0')}, {s('T0')}, {AUX}\nv_add_u32 {T(2)}, {s('T0')}, {T(2)}")
    for n in range(7):
        g(f"ds_read_b64_tr_b16 {R(Q+4*n,2)}, {T(2)} offset:{n*32}")
        g(f"ds_read_b64_tr_b16 {R(Q+4*n+2,2)}, {T(2)} offset:{n*32+4*896}")
    g(f"s_mul_i32 {s('T0')}, {s('BR')}, 28\ns_mul_i32 {s('T1')}, {s('WAVE')}, 7\ns_add_u32 {s('T0')}, {s('T0')}, {s('T1')}\ns_lshl_b32 {s('T0')}, {s('T0')}, 7")
    g(f"s_lshl_b32 {s('T1')}, {s('HKV')}, 4\ns_add_u32 {s('T1')}, {s('T1')}, {s('C')}\ns_add_u32 {s('T0')}, {s('T0')}, {s('T1')}\ns_lshl_b32 {s('T0')}, {s('T0')}, 9\ns_add_u32 {s('T0')}, {s('T0')}, {WS_OG}")
    g(f"v_lshrrev_b32 {T(4)}, 3, {T(1)}\nv_lshlrev_b32 {T(4)}, 16, {T(4)}\nv_lshl_add_u32 {T(4)}, {T(3)}, 7, {T(4)}\nv_lshl_add_u32 {T(4)}, {T(0)}, 5, {T(4)}")
    g(f"v_bfe_u32 {T(5)}, {T(1)}, 2, 1\nv_lshl_add_u32 {T(4)}, {T(5)}, 4, {T(4)}")
    for i in range(8): g(f"v_mov_b32 {R(A0+2*i+1)}, {s('TAG')}")
    g(f"s_mov_b32 {s('MASK',1,0)}, 0xf0f0f0f0\ns_mov_b32 {s('MASK',1,1)}, 0xf0f0f0f0\ns_mov_b32 {s('MASK',1,2)}, 0xff00ff00\ns_mov_b32 {s('MASK',1,3)}, 0xff00ff00")
    g(f"v_lshlrev_b32 {T(0)}, 4, {L}\nv_add_u32 {T(0)}, {L_Q}, {T(0)}")
    g("s_waitcnt lgkmcnt(0)\ns_barrier")
    g.stamp(4)
    g(f"ds_read_b128 {R(X,4)}, {T(0)}\ns_waitcnt lgkmcnt(0)")
    for n in range(7):
        g(f"v_mfma_f32_16x16x32_bf16 {R(SS+4*n,4)}, {R(Q+4*n,4)}, {R(X,4)}, 0")
    g("s_nop 1")
    mh=s('MASK',2,0); mc=s('MASK',2,2)
    for pr in range(4):
        n0=2*pr; n1=2*pr+1
        base=A0+4*pr
        if n1<7:
            for e in range(2):
                g(f"v_cndmask_b32 {T(6)}, {R(SS+4*n0+e)}, {R(SS+4*n0+2+e)}, {mh}\nv_cndmask_b32 {T(7)}, {R(SS+4*n1+e)}, {R(SS+4*n1+2+e)}, {mh}\nv_cndmask_b32 {R(base+2*e)}, {T(6)}, {T(7)}, {mc}")
        else:
            g("s_nop 4")
            for e in range(2):
                g(f"v_cndmask_b32 {R(base+2*e)}, {R(SS+4*n0+e)}, {R(SS+4*n0+2+e)}, {mh}")
            g(f"s_mov_b64 {s('EX',2)}, exec\ns_mov_b32 exec_lo, 0x00ff00ff\ns_mov_b32 exec_hi, 0x00ff00ff")
        g(f"buffer_store_dwordx4 {R(base,4)}, {T(4)}, {s('SRDW',4)}, {s('T0')} offen {g.cfg.get('stf','sc1')}")
        g(f"s_add_u32 {s('T0')}, {s('T0')}, 131072")
    g(f"s_mov_b64 exec, {s('EX',2)}")
    g.stamp(5)

def cw_init(g, do_cnt):
    g.c("CW init")
    L=v('LANE')
    g(f"v_lshlrev_b32 {T(0)}, 2, {L}\nv_add_u32 {T(0)}, {L_TK}, {T(0)}\nv_mov_b32 {T(1)}, 0\nds_write_b32 {T(0)}, {T(1)}")
    if do_cnt:
        l=g.lab("Lnc")
        g(f"s_cmp_lg_u32 {s('MEM')}, 0\ns_cbranch_scc1 {l}")
        g(f"s_lshl_b32 {s('T0')}, {s('TEAM')}, 8\ns_add_u32 {s('T0')}, {s('T0')}, {WS_CNT}\nv_mov_b32 {T(2)}, 0")
        g(f"s_mov_b64 {s('EX',2)}, exec\ns_mov_b64 exec, 1")
        g(f"buffer_store_dword {T(1)}, {T(2)}, {s('SRDW',4)}, {s('T0')} offen sc1")
        g(f"s_mov_b64 exec, {s('EX',2)}\n{l}:")

def cw_qproj_v2(g):
    L=v('LANE'); XR=V['Q']
    g.c("x operand loads")
    srd(g,'SRDA','X',4*896)
    g(f"v_and_b32 {T(0)}, 3, {L}\nv_mul_u32_u24 {T(0)}, 896, {T(0)}\nv_lshrrev_b32 {T(1)}, 4, {L}\nv_lshl_add_u32 {T(0)}, {T(1)}, 4, {T(0)}")
    g(f"s_and_b32 {s('T0')}, {s('C')}, 1\ns_mul_i32 {s('T0')}, {s('T0')}, 448")
    for st in range(7):
        g(f"buffer_load_dwordx4 {R(XR+4*st,4)}, {T(0)}, {s('SRDA',4)}, {s('T0')} offen offset:{st*64} {g.cfg.get('xpol','nt')}")
    g("s_waitcnt lgkmcnt(0)\ns_barrier")
    g.stamp(1)
    g(f"v_and_b32 {T(2)}, 15, {L}\nv_lshrrev_b32 {T(3)}, 2, {T(2)}\nv_and_b32 {T(4)}, 3, {T(2)}")
    g(f"v_lshl_add_u32 {T(3)}, {T(1)}, 3, {T(3)}\nv_lshlrev_b32 {T(3)}, 7, {T(3)}\nv_lshl_add_u32 {T(3)}, {T(4)}, 3, {T(3)}\nv_add_u32 {T(3)}, {AUX}, {T(3)}")
    AB=V['KB']
    D=V['O']
    for cb in range(4):
        for st in range(7):
            g(f"ds_read_b64_tr_b16 {R(AB+28*cb+4*st,2)}, {T(3)} offset:{st*4096+cb*32}")
            g(f"ds_read_b64_tr_b16 {R(AB+28*cb+4*st+2,2)}, {T(3)} offset:{st*4096+cb*32+512}")
    g(f"v_lshlrev_b32 {T(5)}, 16, {T(4)}\nv_lshrrev_b32 {T(6)}, 3, {T(2)}\nv_lshl_add_u32 {T(5)}, {T(6)}, 7, {T(5)}\nv_lshl_add_u32 {T(5)}, {T(1)}, 5, {T(5)}\nv_bfe_u32 {T(6)}, {T(2)}, 2, 1\nv_lshl_add_u32 {T(5)}, {T(6)}, 4, {T(5)}")
    g(f"s_lshl_b32 {s('T0')}, {s('BR')}, 5\ns_add_u32 {s('T0')}, {s('T0')}, {s('HKV')}\ns_lshl_b32 {s('T0')}, {s('T0')}, 13\ns_add_u32 {s('T0')}, {s('T0')}, {WS_QG}")
    g(f"s_and_b32 {s('T1')}, {s('C')}, 1\ns_lshl_b32 {s('T1')}, {s('T1')}, 12\ns_add_u32 {s('T0')}, {s('T0')}, {s('T1')}\ns_lshr_b32 {s('T1')}, {s('C')}, 1\ns_lshl_b32 {s('T1')}, {s('T1')}, 9\ns_add_u32 {s('T0')}, {s('T0')}, {s('T1')}")
    g(f"s_mov_b32 {s('MASK',1,0)}, 0xf0f0f0f0\ns_mov_b32 {s('MASK',1,1)}, 0xf0f0f0f0\ns_mov_b32 {s('MASK',1,2)}, 0xff00ff00\ns_mov_b32 {s('MASK',1,3)}, 0xff00ff00")
    get_tag(g)
    g(f"v_mov_b32 {T(9)}, {s('TAG')}\nv_mov_b32 {T(11)}, {s('TAG')}\nv_mov_b32 {T(13)}, {s('TAG')}\nv_mov_b32 {T(15)}, {s('TAG')}")
    g("s_waitcnt vmcnt(0) lgkmcnt(0)")
    g.stamp(9)
    for st in range(7):
        for cb in range(4):
            g(f"v_mfma_f32_16x16x32_bf16 {R(D+4*cb,4)}, {R(AB+28*cb+4*st,4)}, {R(XR+4*st,4)}, {'0' if st==0 else R(D+4*cb,4)}")
    g("s_nop 7")
    mh=s('MASK',2,0); mc=s('MASK',2,2)
    for pr in range(2):
        n0=2*pr; n1=2*pr+1; base=V['T']+8+4*pr
        for e in range(2):
            g(f"v_cndmask_b32 {T(6)}, {R(D+4*n0+e)}, {R(D+4*n0+2+e)}, {mh}\nv_cndmask_b32 {T(7)}, {R(D+4*n1+e)}, {R(D+4*n1+2+e)}, {mh}\nv_cndmask_b32 {R(base+2*e)}, {T(6)}, {T(7)}, {mc}")
        g(f"buffer_store_dwordx4 {R(base,4)}, {T(5)}, {s('SRDW',4)}, {s('T0')} offen offset:{pr*256} sc1")
    g.stamp(2)

def cw_qrecv_v2(g):
    g.c("receive q")
    L=v('LANE'); KB=V['KB']
    g(f"v_lshlrev_b32 {T(0)}, 6, {L}")
    g(f"s_lshl_b32 {s('T0')}, {s('TEAM')}, 13\ns_add_u32 {s('T0')}, {s('T0')}, {WS_QG}\ns_add_u32 {s('T1')}, {s('T0')}, 4096")
    lp=g.lab("Lqr")
    if g.cfg.get('qdelay'): g(f"s_sleep {g.cfg['qdelay']}")
    g(f"s_mov_b32 {s('SPIN')}, 0\n{lp}:")
    for k in range(2):
        for n in range(4):
            g(f"buffer_load_dwordx4 {R(KB+16*k+4*n,4)}, {T(0)}, {s('SRDW',4)}, {s('T0') if k==0 else s('T1')} offen offset:{16*n} sc1")
    g("s_waitcnt vmcnt(0)")
    g(f"v_xor_b32 {T(1)}, {s('TAG')}, {R(KB+1)}")
    for n in range(1,16): g(f"v_xor_b32 {T(2)}, {s('TAG')}, {R(KB+1+2*n)}\nv_or_b32 {T(1)}, {T(1)}, {T(2)}")
    g(f"v_cmp_ne_u32 vcc, 0, {T(1)}\ns_add_u32 {s('SPIN')}, {s('SPIN')}, 1\ns_cmp_gt_u32 {s('SPIN')}, {SPIN_MAX}\ns_cbranch_scc1 {lp}_x")
    g(f"s_cbranch_vccz {lp}_x\ns_sleep {g.cfg.get('qsleep',2)}\ns_branch {lp}\n{lp}_x:")
    for e in range(8): g(f"v_add_f32 {R(KB+2*e)}, {R(KB+2*e)}, {R(KB+16+2*e)}")
    for e in range(4): g(f"v_cvt_pk_bf16_f32 {T(4+e)}, {R(KB+4*e)}, {R(KB+4*e+2)}")
    g(f"v_lshlrev_b32 {T(0)}, 4, {L}\nv_add_u32 {T(0)}, {L_Q}, {T(0)}\nds_write_b128 {T(0)}, {T(4,4)}")
    g("s_waitcnt lgkmcnt(0)")
    g(f"v_mov_b32 {T(0)}, {L_QF}\nv_mov_b32 {T(1)}, 1\nds_write_b32 {T(0)}, {T(1)}")
    g.stamp(3)

def issue_wq_dma_v1(g):
    g.c("wq slice DMA (7 x 1KB per wave): 448 rows x 64 B")
    srd(g,'SRDA','WQ',448*8192)
    L=v('LANE')
    g(f"v_lshrrev_b32 {T(0)}, 2, {L}\nv_lshlrev_b32 {T(0)}, 13, {T(0)}")
    g(f"v_and_b32 {T(1)}, 3, {L}\nv_lshl_add_u32 {T(0)}, {T(1)}, 4, {T(0)}")
    g(f"s_lshl_b32 {s('T0')}, {s('HKV')}, 10\ns_lshl_b32 {s('T1')}, {s('C')}, 6\ns_add_u32 {s('T0')}, {s('T0')}, {s('T1')}")
    g(f"s_mul_i32 {s('T1')}, {s('WAVE')}, {7*131072}\ns_add_u32 {s('T0')}, {s('T0')}, {s('T1')}")
    g(f"s_mul_i32 {s('T1')}, {s('WAVE')}, {7*1024}\ns_add_u32 {s('T1')}, {s('T1')}, {AUX}")
    for n in range(7):
        g(f"s_mov_b32 m0, {s('T1')}\ns_add_u32 {s('T1')}, {s('T1')}, 1024")
        g(f"buffer_load_dwordx4 {T(0)}, {s('SRDA',4)}, {s('T0')} offen {g.cfg.get('wqpol','nt')} lds")
        g(f"s_add_u32 {s('T0')}, {s('T0')}, 131072")
    g.vm_issue('wq',7)

def cw_qproj_v1(g):
    L=v('LANE'); XR=V['Q']
    g.c("x operand loads")
    srd(g,'SRDA','X',4*896)
    g(f"v_and_b32 {T(0)}, 3, {L}\nv_mul_u32_u24 {T(0)}, 896, {T(0)}\nv_lshrrev_b32 {T(1)}, 4, {L}\nv_lshl_add_u32 {T(0)}, {T(1)}, 4, {T(0)}")
    for st in range(14):
        g(f"buffer_load_dwordx4 {R(XR+4*st,4)}, {T(0)}, {s('SRDA',4)}, 0 offen offset:{st*64} {g.cfg.get('xpol','nt')}")
    g("s_waitcnt lgkmcnt(0)\ns_barrier")
    g.stamp(1)
    g(f"v_and_b32 {T(2)}, 15, {L}\nv_lshrrev_b32 {T(3)}, 2, {T(2)}\nv_and_b32 {T(4)}, 3, {T(2)}")
    g(f"v_lshl_add_u32 {T(3)}, {T(1)}, 3, {T(3)}\nv_lshlrev_b32 {T(3)}, 6, {T(3)}\nv_lshl_add_u32 {T(3)}, {T(4)}, 3, {T(3)}\nv_add_u32 {T(3)}, {AUX}, {T(3)}")
    AB=V['QA']
    D=V['O']
    for cb in range(2):
        for st in range(14):
            g(f"ds_read_b64_tr_b16 {R(AB+56*cb+4*st,2)}, {T(3)} offset:{st*2048+cb*32}")
            g(f"ds_read_b64_tr_b16 {R(AB+56*cb+4*st+2,2)}, {T(3)} offset:{st*2048+cb*32+256}")
    g(f"v_lshlrev_b32 {T(5)}, 16, {T(4)}\nv_bfe_u32 {T(6)}, {T(2)}, 2, 1\nv_lshl_add_u32 {T(5)}, {T(6)}, 6, {T(5)}\nv_lshl_add_u32 {T(5)}, {T(1)}, 4, {T(5)}")
    g(f"s_lshl_b32 {s('T0')}, {s('BR')}, 5\ns_add_u32 {s('T0')}, {s('T0')}, {s('HKV')}\ns_lshl_b32 {s('T0')}, {s('T0')}, 13\ns_add_u32 {s('T0')}, {s('T0')}, {WS_QG}")
    g(f"s_lshl_b32 {s('T1')}, {s('C')}, 7\ns_add_u32 {s('T0')}, {s('T0')}, {s('T1')}")
    g(f"s_mov_b32 {s('MASK',1,0)}, 0xf0f0f0f0\ns_mov_b32 {s('MASK',1,1)}, 0xf0f0f0f0")
    get_tag(g)
    g(f"v_mov_b32 {T(9)}, {s('TAG')}\nv_mov_b32 {T(11)}, {s('TAG')}")
    g("s_waitcnt vmcnt(0) lgkmcnt(0)")
    g.stamp(9)
    for st in range(14):
        for cb in range(2):
            g(f"v_mfma_f32_16x16x32_bf16 {R(D+4*cb,4)}, {R(AB+56*cb+4*st,4)}, {R(XR+4*st,4)}, {'0' if st==0 else R(D+4*cb,4)}")
    g("s_nop 7")
    mh=s('MASK',2,0)
    for cb in range(2):
        g(f"v_cvt_pk_bf16_f32 {T(12+2*cb)}, {R(D+4*cb)}, {R(D+4*cb+1)}\nv_cvt_pk_bf16_f32 {T(13+2*cb)}, {R(D+4*cb+2)}, {R(D+4*cb+3)}")
    g(f"v_cndmask_b32 {T(8)}, {T(12)}, {T(14)}, {mh}\nv_cndmask_b32 {T(10)}, {T(13)}, {T(15)}, {mh}")
    g(f"s_mov_b64 {s('EX',2)}, exec\ns_mov_b32 exec_lo, 0x00ff00ff\ns_mov_b32 exec_hi, 0x00ff00ff")
    g(f"buffer_store_dwordx4 {T(8,4)}, {T(5)}, {s('SRDW',4)}, {s('T0')} offen sc1")
    g(f"s_mov_b64 exec, {s('EX',2)}")
    g.stamp(2)

def cw_qrecv_v1(g):
    g.c("receive q")
    L=v('LANE'); KB=V['KB']
    g(f"v_lshlrev_b32 {T(0)}, 5, {L}")
    g(f"s_lshl_b32 {s('T0')}, {s('TEAM')}, 13\ns_add_u32 {s('T0')}, {s('T0')}, {WS_QG}")
    lp=g.lab("Lqr")
    if g.cfg.get('qdelay'): g(f"s_sleep {g.cfg['qdelay']}")
    g(f"s_mov_b32 {s('SPIN')}, 0\n{lp}:")
    g(f"buffer_load_dwordx4 {R(KB,4)}, {T(0)}, {s('SRDW',4)}, {s('T0')} offen sc1")
    g(f"buffer_load_dwordx4 {R(KB+4,4)}, {T(0)}, {s('SRDW',4)}, {s('T0')} offen offset:16 sc1")
    g("s_waitcnt vmcnt(0)")
    g(f"v_xor_b32 {T(1)}, {s('TAG')}, {R(KB+1)}")
    for n in range(1,4): g(f"v_xor_b32 {T(2)}, {s('TAG')}, {R(KB+1+2*n)}\nv_or_b32 {T(1)}, {T(1)}, {T(2)}")
    g(f"v_cmp_ne_u32 vcc, 0, {T(1)}\ns_add_u32 {s('SPIN')}, {s('SPIN')}, 1\ns_cmp_gt_u32 {s('SPIN')}, {SPIN_MAX}\ns_cbranch_scc1 {lp}_x")
    g(f"s_cbranch_vccz {lp}_x\ns_sleep {g.cfg.get('qsleep',2)}\ns_branch {lp}\n{lp}_x:")
    g(f"v_mov_b32 {T(4)}, {R(KB)}\nv_mov_b32 {T(5)}, {R(KB+2)}\nv_mov_b32 {T(6)}, {R(KB+4)}\nv_mov_b32 {T(7)}, {R(KB+6)}")
    g(f"v_lshlrev_b32 {T(0)}, 4, {L}\nv_add_u32 {T(0)}, {L_Q}, {T(0)}\nds_write_b128 {T(0)}, {T(4,4)}")
    g("s_waitcnt lgkmcnt(0)")
    g(f"v_mov_b32 {T(0)}, {L_QF}\nv_mov_b32 {T(1)}, 1\nds_write_b32 {T(0)}, {T(1)}")
    g.stamp(3)

def issue_wq_dma(g): (issue_wq_dma_v2 if g.cfg.get('qv')==2 else issue_wq_dma_v1)(g)
def cw_qproj(g): (cw_qproj_v2 if g.cfg.get('qv')==2 else cw_qproj_v1)(g)
def cw_qrecv(g): (cw_qrecv_v2 if g.cfg.get('qv')==2 else cw_qrecv_v1)(g)

def cw_wo_dma(g):
    g.c("wo slice DMA -> AUX")
    L=v('LANE')
    srd(g,'SRDA','WO',4096*896)
    g(f"v_lshlrev_b32 {T(0)}, 4, {L}")
    g(f"s_lshl_b32 {s('T0')}, {s('HKV')}, 9\ns_lshl_b32 {s('T1')}, {s('C')}, 5\ns_add_u32 {s('T0')}, {s('T0')}, {s('T1')}\ns_mul_i32 {s('T0')}, {s('T0')}, 896")
    g(f"s_mov_b32 {s('T1')}, {AUX}")
    for n in range(28):
        g(f"s_mov_b32 m0, {s('T1')}\ns_add_u32 {s('T1')}, {s('T1')}, 1024")
        g(f"buffer_load_dwordx4 {T(0)}, {s('SRDA',4)}, {s('T0')} offen nt lds")
        g(f"s_add_u32 {s('T0')}, {s('T0')}, 1024")

def cw_pretouch(g):
    g.c("pretouch")
    if g.cfg.get('ptstag'):
        l=g.lab("Lstag")
        g(f"s_and_b32 {s('T0')}, s2, 31\n{l}:\ns_sleep {g.cfg['ptstag']}\ns_sub_u32 {s('T0')}, {s('T0')}, 1\ns_cmp_ge_i32 {s('T0')}, 0\ns_cbranch_scc1 {l}")
    L=v('LANE'); mode=g.cfg.get('pretouch'); pp=g.cfg.get('ptpol','')
    if mode==3:
        g(f"s_mul_i32 {s('T5')}, s2, {PGS}\ns_add_u32 {s('T5')}, {s('T5')}, {WS_PG}")
        g(f"s_add_u32 s46, {s('WS')}, {s('T5')}\ns_addc_u32 s47, {s('WS',1,1)}, 0")
        for i in range(33): g(f"s_load_dword {s('T6')}, s[46:47], {i*128}")
        g(f"s_mul_i32 {s('T0')}, {s('BR')}, 28\ns_lshl_b32 {s('T0')}, {s('T0')}, 7")
        g(f"s_lshl_b32 {s('T1')}, {s('HKV')}, 4\ns_add_u32 {s('T1')}, {s('T1')}, {s('C')}\ns_add_u32 {s('T0')}, {s('T0')}, {s('T1')}\ns_lshl_b32 {s('T0')}, {s('T0')}, 9\ns_add_u32 {s('T0')}, {s('T0')}, {WS_OG}")
        for half in range(2):
            g(f"s_add_u32 s46, {s('WS')}, {s('T0')}\ns_addc_u32 s47, {s('WS',1,1)}, 0")
            for n in range(14):
                for q in range(4): g(f"s_load_dword {s('T6')}, s[46:47], {n*65536+q*128}")
            g(f"s_add_u32 {s('T0')}, {s('T0')}, {14*65536}")
        g("s_waitcnt lgkmcnt(0)")
        return
    g(f"s_not_b32 {s('T0')}, {s('TAG')}")
    for i in range(4): g(f"v_mov_b32 {T(4+i)}, {s('T0')}")
    g(f"v_lshlrev_b32 {T(0)}, 4, {L}")
    g(f"s_mul_i32 {s('T5')}, s2, {PGS}\ns_add_u32 {s('T5')}, {s('T5')}, {WS_PG}")
    KB=V['KB']
    def op(i,addr,so,off=0):
        if mode==1: g(f"buffer_store_dwordx4 {T(4,4)}, {addr}, {s('SRDW',4)}, {so} offen offset:{off} sc1")
        else: g(f"buffer_load_dwordx4 {R(KB+4*i,4)}, {addr}, {s('SRDW',4)}, {so} offen offset:{off} {pp}")
    for i in range(4): op(i,T(0),s('T5'),i*1024)
    g(f"s_add_u32 {s('T5')}, {s('T5')}, 4096\ns_mov_b64 exec, 3")
    op(4,T(0),s('T5'))
    g("s_mov_b64 exec, -1")
    g(f"v_lshrrev_b32 {T(1)}, 5, {L}\nv_lshlrev_b32 {T(1)}, 16, {T(1)}\nv_and_b32 {T(2)}, 31, {L}\nv_lshl_add_u32 {T(1)}, {T(2)}, 4, {T(1)}")
    g(f"s_mul_i32 {s('T0')}, {s('BR')}, 28\ns_lshl_b32 {s('T0')}, {s('T0')}, 7")
    g(f"s_lshl_b32 {s('T1')}, {s('HKV')}, 4\ns_add_u32 {s('T1')}, {s('T1')}, {s('C')}\ns_add_u32 {s('T0')}, {s('T0')}, {s('T1')}\ns_lshl_b32 {s('T0')}, {s('T0')}, 9\ns_add_u32 {s('T0')}, {s('T0')}, {WS_OG}")
    for i in range(14):
        op(5+i,T(1),s('T0')); g(f"s_add_u32 {s('T0')}, {s('T0')}, 131072")

def cw_tickets(g):
    g.c("ticket service")
    NS=g.cfg['NS']; POOL=(32-NS)*16; kn=g.kn; L=v('LANE')
    g(f"v_mov_b32 {T(0)}, 0")
    g(f"s_lshl_b32 {s('T0')}, {s('TEAM')}, 8\ns_add_u32 {s('T0')}, {s('T0')}, {WS_CNT}\nv_mov_b32 {T(1)}, {s('T0')}")
    g(f"v_lshlrev_b32 {T(2)}, 2, {L}\nv_add_u32 {T(2)}, {L_REQ}, {T(2)}")
    g(f"v_lshlrev_b32 {T(3)}, 5, {L}\nv_add_u32 {T(3)}, {L_TK}, {T(3)}")
    g(f"s_mov_b64 {s('ACT',2)}, 0xf\ns_mov_b32 {s('SPIN')}, 0")
    g(f"L_twl_{kn}:")
    g(f"s_mov_b64 exec, {s('ACT',2)}")
    g(f"s_add_u32 {s('SPIN')}, {s('SPIN')}, 1\ns_cmp_gt_u32 {s('SPIN')}, {SPIN_MAX*4}\ns_cbranch_scc1 L_twe_{kn}")
    g(f"ds_read_b32 {T(4)}, {T(2)}\ns_waitcnt lgkmcnt(0)\nv_add_u32 {T(4)}, 1, {T(4)}")
    g(f"v_cmp_lt_u32 vcc, {T(0)}, {T(4)}\ns_nop 1\ns_and_b64 exec, exec, vcc\ns_cbranch_execz L_tws_{kn}")
    g(f"v_mov_b32 {T(5)}, 1\nbuffer_atomic_add {T(5)}, {T(1)}, {s('SRDW',4)}, 0 offen sc0 sc1\ns_waitcnt vmcnt(0)")
    g(f"v_cmp_gt_u32 vcc, {POOL}, {T(5)}\nv_mov_b32 {T(6)}, {END_TK}\ns_nop 1\nv_cndmask_b32 {T(6)}, {T(6)}, {T(5)}, vcc")
    g(f"v_and_b32 {T(7)}, 7, {T(0)}\nv_lshl_add_u32 {T(7)}, {T(7)}, 2, {T(3)}\nv_add_u32 {T(0)}, 1, {T(0)}\nv_lshl_or_b32 {T(6)}, {T(0)}, 12, {T(6)}")
    g(f"ds_write_b32 {T(7)}, {T(6)}")
    g(f"v_cmp_le_u32 vcc, {POOL}, {T(5)}\ns_nop 1\ns_andn2_b64 {s('ACT',2)}, {s('ACT',2)}, vcc")
    g(f"s_cmp_eq_u64 {s('ACT',2)}, 0\ns_cbranch_scc1 L_twe_{kn}\ns_branch L_twl_{kn}")
    g(f"L_tws_{kn}:\ns_sleep 2\ns_branch L_twl_{kn}")
    g(f"L_twe_{kn}:\ns_mov_b64 exec, -1\ns_waitcnt vmcnt(0) lgkmcnt(0)")

def hop2(g):
    g.c("hop2")
    L=v('LANE'); KB=V['KB']; kn=g.kn
    g(f"s_cmp_ge_u32 {s('WL')}, 112\ns_cbranch_scc1 L_fin_{kn}")
    g(f"v_lshrrev_b32 {T(0)}, 3, {L}\nv_lshlrev_b32 {T(0)}, 9, {T(0)}\nv_and_b32 {T(1)}, 7, {L}\nv_lshl_add_u32 {T(0)}, {T(1)}, 4, {T(0)}")
    g(f"s_mul_i32 {s('T0')}, {s('BR')}, 28\ns_lshr_b32 {s('T1')}, {s('WL')}, 2\ns_add_u32 {s('T0')}, {s('T0')}, {s('T1')}\ns_lshl_b32 {s('T0')}, {s('T0')}, 16")
    g(f"s_and_b32 {s('T2')}, {s('WL')}, 3\ns_lshl_b32 {s('T2')}, {s('T2')}, 7\ns_add_u32 {s('T0')}, {s('T0')}, {s('T2')}\ns_add_u32 {s('T0')}, {s('T0')}, {WS_OG}")
    lp=g.lab("Lh2")
    if g.cfg.get('h2delay'): g(f"s_sleep {g.cfg['h2delay']}")
    g(f"s_mov_b32 {s('SPIN')}, 0\n{lp}:\ns_mov_b32 {s('T5')}, {s('T0')}")
    for i in range(16):
        g(f"buffer_load_dwordx4 {R(KB+4*i,4)}, {T(0)}, {s('SRDW',4)}, {s('T5')} offen sc1\ns_add_u32 {s('T5')}, {s('T5')}, 4096")
    g("s_waitcnt vmcnt(0)")
    g(f"v_xor_b32 {T(2)}, {s('TAG')}, {R(KB+1)}")
    for n in range(1,32): g(f"v_xor_b32 {T(3)}, {s('TAG')}, {R(KB+1+2*n)}\nv_or_b32 {T(2)}, {T(2)}, {T(3)}")
    g(f"v_cmp_ne_u32 vcc, 0, {T(2)}\ns_add_u32 {s('SPIN')}, {s('SPIN')}, 1\ns_cmp_gt_u32 {s('SPIN')}, {SPIN_MAX}\ns_cbranch_scc1 {lp}_x")
    g(f"s_cbranch_vccz {lp}_x\ns_sleep 2\ns_branch {lp}\n{lp}_x:")
    g.stamp(6)
    if g.cfg.get('stamps'): g(f"s_mov_b32 s{S['ST']+18}, {s('SPIN')}\ns_mov_b32 s{S['ST']+19}, 0")
    g(f"v_mov_b32 {T(4)}, {R(KB)}\nv_mov_b32 {T(5)}, {R(KB+2)}")
    for i in range(1,16): g(f"v_add_f32 {T(4)}, {T(4)}, {R(KB+4*i)}\nv_add_f32 {T(5)}, {T(5)}, {R(KB+4*i+2)}")
    for rg in (T(4),T(5)):
        g(f"s_nop 1\nv_mov_b32_dpp {T(6)}, {rg} row_ror:8 row_mask:0xf bank_mask:0xf\nv_add_f32 {rg}, {rg}, {T(6)}")
        xlane(g,rg,"v_add_f32",T(6),T(7))
    g(f"v_cvt_pk_bf16_f32 {T(4)}, {T(4)}, {T(5)}")
    srd(g,'SRDA','OUT',4*896*2)
    g(f"v_lshlrev_b32 {T(6)}, 2, {T(1)}")
    g(f"s_mul_i32 {s('T0')}, {s('BR')}, 448\ns_lshr_b32 {s('T1')}, {s('WL')}, 2\ns_lshl_b32 {s('T1')}, {s('T1')}, 4\ns_add_u32 {s('T0')}, {s('T0')}, {s('T1')}\ns_lshl_b32 {s('T0')}, {s('T0')}, 1")
    g(f"s_and_b32 {s('T1')}, {s('WL')}, 3\ns_mul_i32 {s('T1')}, {s('T1')}, {896*2}\ns_add_u32 {s('T0')}, {s('T0')}, {s('T1')}")
    g(f"s_mov_b64 exec, 0xff")
    g(f"buffer_store_dword {T(4)}, {T(6)}, {s('SRDA',4)}, {s('T0')} offen")
    g(f"s_cmp_lg_u32 {s('WL')}, 0\ns_cbranch_scc1 L_fin_{kn}")
    g(f"s_add_u32 {s('T0')}, {s('E')}, 1\nv_mov_b32 {T(8)}, {s('T0')}\ns_lshl_b32 {s('T1')}, {s('BR')}, 8\nv_mov_b32 {T(9)}, {s('T1')}\ns_mov_b64 exec, 1")
    g(f"buffer_store_dword {T(8)}, {T(9)}, {s('SRDW',4)}, 0 offen offset:{WS_E}")

def dbg_stamps(g):
    g("s_mov_b64 exec, -1\ns_waitcnt lgkmcnt(0)")
    g("s_load_dwordx2 s[46:47], s[0:1], 88\ns_waitcnt lgkmcnt(0)")
    g(f"s_mov_b32 {s('SRDA',1,0)}, s46\ns_mov_b32 {s('SRDA',1,1)}, s47\ns_mov_b32 {s('SRDA',1,2)}, 256\ns_mov_b32 {s('SRDA',1,3)}, 0x20000")
    g(f"v_mov_b32 {T(0)}, 0\ns_mov_b64 exec, 1")
    for i in range(8):
        g(f"v_mov_b32 {T(4)}, s{S['ST']+2*i}\nbuffer_atomic_umax {T(4)}, {T(0)}, {s('SRDA',4)}, 0 offen offset:{4*i} sc1\ns_nop 1")
    g(f"s_not_b32 {s('T0')}, s{S['ST']}\nv_mov_b32 {T(4)}, {s('T0')}\nbuffer_atomic_umax {T(4)}, {T(0)}, {s('SRDA',4)}, 0 offen offset:40 sc1")

def write_stamps(g, wave_sel):
    if not g.cfg.get('stamps'): return
    g("s_mov_b64 exec, -1\ns_waitcnt lgkmcnt(0)")
    g(f"s_mul_i32 {s('T0')}, s2, 160\ns_add_u32 {s('T0')}, {s('T0')}, {WS_STAMP+wave_sel*65536}\nv_mov_b32 {T(0)}, 0\ns_mov_b64 exec, 1")
    for i in range(0,20,4):
        for k in range(4): g(f"v_mov_b32 {T(4+k)}, s{S['ST']+i+k}")
        g(f"buffer_store_dwordx4 {T(4,4)}, {T(0)}, {s('SRDW',4)}, {s('T0')} offen offset:{i*4}\ns_nop 1")

def kernel(g, kn, sections):
    g.kn=kn
    g(f".text\n.globl {kn}\n.p2align 8\n.type {kn},@function\n{kn}:")
    if g.cfg.get('stamps'):
        for i in range(20): g(f"s_mov_b32 s{S['ST']+i}, 0")
    prologue(g)
    g(f"s_cmp_eq_u32 {s('WAVE')}, 4\ns_cbranch_scc1 L_cw_{kn}")
    st='stream' in sections; qp='qproj' in sections
    if st:
        stream_waves(g, qp)
    else:
        if qp:
            g.q=[]; issue_wq_dma(g); g.vm_wait('wq'); g("s_barrier")
        get_tag(g)
        if 'hop1' in sections: g("s_barrier")
    if 'hop1' in sections: hop1_proj(g)
    if g.cfg.get('stamps'):
        g.stamp(7)
        l=g.lab("Lst"); g(f"s_cmp_lg_u32 {s('WAVE')}, 0\ns_cbranch_scc1 L_end_{kn}")
        write_stamps(g,0)
    g(f"s_branch L_end_{kn}")
    g(f"L_cw_{kn}:")
    cw_init(g, do_cnt=qp)
    if qp: cw_qproj(g)
    else:
        if st: g("s_waitcnt lgkmcnt(0)\ns_barrier")
        get_tag(g)
    if st:
        cw_qrecv(g)
    if 'hop1' in sections: cw_wo_dma(g)
    if st and g.cfg.get('pretouch'): cw_pretouch(g)
    if st: cw_tickets(g)
    if st or 'hop1' in sections:
        g("s_waitcnt vmcnt(0) lgkmcnt(0)\ns_barrier")
    g.stamp(4)
    if 'hop1' in sections: hop1_gather(g)
    if 'hop2' in sections: hop2(g)
    g(f"L_fin_{kn}:")
    if g.cfg.get('stamps'):
        g.stamp(7)
        if g.cfg.get('dbgst'): dbg_stamps(g)
        else: write_stamps(g,1)
    g(f"L_end_{kn}:\ns_endpgm")
    g(f""".section .rodata,"a"
.p2align 6
.amdhsa_kernel {kn}
.amdhsa_next_free_vgpr 256
.amdhsa_next_free_sgpr 102
.amdhsa_accum_offset 256
.amdhsa_group_segment_fixed_size 0
.amdhsa_kernarg_size 104
.amdhsa_user_sgpr_count 2
.amdhsa_user_sgpr_kernarg_segment_ptr 1
.amdhsa_system_sgpr_workgroup_id_x 1
.end_amdhsa_kernel""")

HEADER=open(os.path.join(os.path.dirname(os.path.abspath(__file__)),"header.txt")).read()

def build(cfg, plan, path):
    g=Gen(cfg)
    for kn,sec in plan: kernel(g,kn,sec)
    hdr=HEADER
    if len(plan)==1: hdr+=f"; @launch grid=(256,1,1) block=(320,1,1) lds={LDS_TOTAL}\n"
    else:
        for kn,sec in plan: hdr+=f"; @launch kernel={kn} grid=(256,1,1) block=(320,1,1) lds={LDS_TOTAL}\n"
    src=hdr+'.amdgcn_target "amdgcn-amd-amdhsa--gfx950"\n'+"\n".join(g.L)+"\n"
    open(path,"w").write(src)
    return src

def assemble(path_s, kernels):
    src=open(path_s).read()
    md=".amdgpu_metadata\n---\namdhsa.version: [1, 2]\namdhsa.kernels:\n"
    for k in kernels:
        md+=f"""  - .name: {k}
    .symbol: {k}.kd
    .kernarg_segment_size: 104
    .kernarg_segment_align: 8
    .group_segment_fixed_size: 0
    .private_segment_fixed_size: 0
    .wavefront_size: 64
    .sgpr_count: 102
    .vgpr_count: 256
    .max_flat_workgroup_size: 320
    .args:
      - {{.name: kernargs, .size: 104, .offset: 0, .value_kind: by_value}}
"""
    md+="...\n.end_amdgpu_metadata\n"
    open(path_s+".h.s","w").write(src+md)
    co=path_s[:-2]+".co"
    r=subprocess.run(["clang","-x","assembler","-target","amdgcn-amd-amdhsa","-mcpu=gfx950",path_s+".h.s","-o",co],capture_output=True,text=True)
    if r.returncode: print(r.stderr[:3000]); raise SystemExit(1)
    return co

if __name__=="__main__":
    cfg=dict(NS=26,B=8,predrain=2,pol="nt")
    out=sys.argv[1] if len(sys.argv)>1 else "."
    plan=[("q_kernel",["qproj"]),("s_kernel",["stream"]),("h1_kernel",["hop1"]),("h2_kernel",["hop2"])]
    build(dict(cfg),plan,f"{out}/split.s"); assemble(f"{out}/split.s",[k for k,_ in plan])
    plan=[(NAME+"_kernel",["qproj","stream","hop1","hop2"])]
    build(dict(cfg),plan,f"{out}/fused.s"); assemble(f"{out}/fused.s",[k for k,_ in plan])
    print("ok")
```

```python
import sys; sys.path.insert(0,'gen')
import gen
K=gen.NAME+"_kernel"
cfg=dict(NS=26,B=24,predrain=2,pol="nt",D=1,xpol="",h1delay=30,h2delay=45,lay=2,qdelay=40)
if len(sys.argv)>1: cfg.update(eval(sys.argv[1]))
gen.build(cfg,[(K,["qproj","stream","hop1","hop2"])],"cdna_kernels/"+gen.NAME+".s")
print(cfg)
```

```python
import sys, os, subprocess, struct

NAME="concat_heads__gqa_block_cached__gqa_block_cached__decode"
def f2u(f): return struct.unpack("<I",struct.pack("<f",f))[0]

WS_E    = 0
WS_CNT  = 4096
WS_QG   = 0x10000
WS_PG   = 0x90000
PGS     = 4608
WS_OG   = 0x200000
WS_USED = 0x580000
WS_STAMP= 512<<20
SLOT=8192
RING=4*4*SLOT
AUX=RING
MISC=AUX+28672
L_Q   = MISC
L_TK  = MISC+1024
L_REQ = MISC+1152
L_QF  = MISC+1168
LDS_TOTAL=163840
C_SCALE = 0.09016844005555896
END_TK=0xFFF
SPIN_MAX=400000

S=dict(WG=2, WAVE=3, BR=4, TP=5, MEM=6, C=7,
 X=8, K=10, V=12, WQ=14, WO=16, OUT=18, WS=20, TAG=22, E=23,
 SRDK=24, SRDV=28, SRDA=32, SRDW=36,
 OFF=40, OFF4=41, LB=42, T0=43, T1=44, T2=45, P0=46, P1=47,
 MASK=48, WBASE=64, TKI=65, MBX=66, SPIN=67, TEAM=68, B=69, HKV=70, WL=71,
 EX=72, ACT=74, ST=76, CS=96, T5=97, T6=98, T7=99, NUNIT=100)
def s(n,k=1,o=0):
    b=S[n]+o
    return f"s{b}" if k==1 else f"s[{b}:{b+k-1}]"
V=dict(TID=0, LANE=1, D=2, KA=6, VA=10, M=18, L=19, T=20, O=36, A=44, Q=60, KB=92, KB2=124, VB=156, SS=188, X0=220, QA=116)
def v(n,i=0,k=1):
    b=V[n]+i
    return f"v{b}" if k==1 else f"v[{b}:{b+k-1}]"
def T(i,k=1): return v('T',i,k)
def R(b,k=1): return f"v{b}" if k==1 else f"v[{b}:{b+k-1}]"

class Gen:
    def __init__(self, cfg):
        self.cfg=cfg; self.L=[]; self.uid=0; self.q=[]
    def __call__(self,t):
        for l in t.split("\n"):
            l=l.strip()
            if l: self.L.append(("" if l.endswith(":") else "  ")+l)
    def lab(self,b="L"):
        self.uid+=1; return f"{b}_{self.kn}_{self.uid}"
    def c(self,t): self.L.append("  ; "+t)
    def vm_issue(self,tag,n): self.q.append([tag,n])
    def vm_wait(self,tag):
        idx=max(i for i,(t,n) in enumerate(self.q) if t==tag)
        n=sum(x[1] for x in self.q[idx+1:])
        assert n<=63
        self(f"s_waitcnt vmcnt({n})")
        self.q=self.q[idx+1:]
    def stamp(self,i):
        if self.cfg.get("stamps"):
            self(f"s_memrealtime s[{S['ST']+2*i}:{S['ST']+2*i+1}]")

def srd(g, name, ptr, size, off=None):
    if off is None:
        g(f"s_mov_b32 {s(name,1,0)}, {s(ptr,1,0)}\ns_mov_b32 {s(name,1,1)}, {s(ptr,1,1)}")
    else:
        g(f"s_add_u32 {s(name,1,0)}, {s(ptr,1,0)}, {off}\ns_addc_u32 {s(name,1,1)}, {s(ptr,1,1)}, 0")
    g(f"s_mov_b32 {s(name,1,2)}, {size}\ns_mov_b32 {s(name,1,3)}, 0x20000")

def prologue(g):
    g(f"s_cmp_ge_u32 s2, 256\ns_cbranch_scc1 L_end_{g.kn}")
    g.stamp(0)
    pm=g.cfg.get('perm',0)
    if pm:
        g(f"s_bfe_u32 {s('T0')}, s2, 0x50002\ns_and_b32 {s('T1')}, s2, 3\ns_and_b32 {s('T2')}, s2, 128")
        if pm in (1,3): g(f"s_add_u32 {s('T1')}, {s('T1')}, {s('T0')}\ns_and_b32 {s('T1')}, {s('T1')}, 3")
        if pm in (4,): g(f"s_lshr_b32 {s('T5')}, {s('T0')}, 1\ns_add_u32 {s('T1')}, {s('T1')}, {s('T5')}\ns_and_b32 {s('T1')}, {s('T1')}, 3")
        if pm in (2,3,4): g(f"s_lshr_b32 {s('T5')}, {s('T0')}, 1\ns_and_b32 {s('T0')}, {s('T0')}, 1\ns_lshl_b32 {s('T0')}, {s('T0')}, 4\ns_or_b32 {s('T0')}, {s('T0')}, {s('T5')}")
        if pm==5:
            g(f"s_lshr_b32 {s('T5')}, {s('T0')}, 1\ns_and_b32 {s('T0')}, {s('T0')}, 1\ns_lshr_b32 {s('T2')}, {s('T2')}, 3\ns_or_b32 {s('T5')}, {s('T5')}, {s('T2')}\ns_lshl_b32 {s('T2')}, {s('T0')}, 7\ns_mov_b32 {s('T0')}, {s('T5')}")
        g(f"s_lshl_b32 {s('T0')}, {s('T0')}, 2\ns_or_b32 {s('T0')}, {s('T0')}, {s('T1')}\ns_or_b32 s2, {s('T0')}, {s('T2')}")
    g(f"s_lshr_b32 {s('BR')}, s2, 7\ns_mul_i32 {s('T0')}, {s('BR')}, 40")
    g(f"s_add_u32 s46, s0, {s('T0')}\ns_addc_u32 s47, s1, 0")
    g("s_load_dwordx8 s[8:15], s[46:47], 0\ns_load_dwordx2 s[16:17], s[46:47], 32")
    g("s_load_dwordx2 s[18:19], s[0:1], 80\ns_load_dwordx2 s[20:21], s[0:1], 96")
    g(f"v_and_b32 {v('LANE')}, 63, v0\nv_lshrrev_b32 {T(0)}, 6, v0")
    g(f"s_lshr_b32 {s('TEAM')}, s2, 2\ns_and_b32 {s('TP')}, {s('TEAM')}, 31")
    g(f"v_readfirstlane_b32 {s('WAVE')}, {T(0)}")
    g(f"s_and_b32 {s('MEM')}, s2, 3\ns_and_b32 {s('WL')}, s2, 127")
    g(f"s_lshr_b32 {s('B')}, {s('TP')}, 3\ns_and_b32 {s('HKV')}, {s('TP')}, 7")
    g(f"s_lshl_b32 {s('C')}, {s('MEM')}, 2\ns_add_u32 {s('C')}, {s('C')}, {s('B')}")
    g(f"s_mov_b32 {s('CS')}, {f2u(C_SCALE):#x}")
    g("s_waitcnt lgkmcnt(0)")
    g(f"s_lshl_b32 {s('T0')}, {s('BR')}, 8")
    g(f"s_add_u32 s46, {s('WS')}, {s('T0')}\ns_addc_u32 s47, {s('WS',1,1)}, 0")
    g(f"s_load_dword {s('E')}, s[46:47], {WS_E}")
    srd(g,'SRDW','WS', WS_USED if (not g.cfg.get('stamps') or g.cfg.get('dbgst')) else 0x30000000)

def get_tag(g):
    g("s_waitcnt lgkmcnt(0)")
    g(f"s_mul_i32 {s('TAG')}, {s('E')}, 0x9E3779B1\ns_add_u32 {s('TAG')}, {s('TAG')}, 0x7F4A7C15")

def issue_wq_dma_v2(g):
    g.c("wq slice DMA (7 x 1KB per wave): 224 rows x 128 B")
    srd(g,'SRDA','WQ',448*8192)
    L=v('LANE')
    g(f"v_lshrrev_b32 {T(0)}, 3, {L}\nv_lshlrev_b32 {T(0)}, 13, {T(0)}")
    g(f"v_and_b32 {T(1)}, 7, {L}\nv_lshl_add_u32 {T(0)}, {T(1)}, 4, {T(0)}")
    g(f"s_lshl_b32 {s('T0')}, {s('HKV')}, 10\ns_lshr_b32 {s('T1')}, {s('C')}, 1\ns_lshl_b32 {s('T1')}, {s('T1')}, 7\ns_add_u32 {s('T0')}, {s('T0')}, {s('T1')}")
    g(f"s_and_b32 {s('T1')}, {s('C')}, 1\ns_mul_i32 {s('T1')}, {s('T1')}, {224*8192}\ns_add_u32 {s('T0')}, {s('T0')}, {s('T1')}")
    g(f"s_mul_i32 {s('T1')}, {s('WAVE')}, {56*8192}\ns_add_u32 {s('T0')}, {s('T0')}, {s('T1')}")
    g(f"s_mul_i32 {s('T1')}, {s('WAVE')}, {7*1024}\ns_add_u32 {s('T1')}, {s('T1')}, {AUX}")
    for n in range(7):
        g(f"s_mov_b32 m0, {s('T1')}\ns_add_u32 {s('T1')}, {s('T1')}, 1024")
        g(f"buffer_load_dwordx4 {T(0)}, {s('SRDA',4)}, {s('T0')} offen {g.cfg.get('wqpol','nt')} lds")
        g(f"s_add_u32 {s('T0')}, {s('T0')}, 65536")
    g.vm_issue('wq',7)

def stream_setup1(g):
    g.c("stream setup 1")
    g(f"s_lshl_b32 {s('T0')}, {s('TP')}, 22")
    srd(g,'SRDK','K',4<<20,s('T0')); srd(g,'SRDV','V',4<<20,s('T0'))
    L=v('LANE')
    g(f"v_lshrrev_b32 {T(2)}, 5, {L}\nv_and_b32 {T(3)}, 31, {L}")
    for t in range(4):
        g(f"v_add_u32 {T(4)}, {2*t}, {T(2)}\nv_lshlrev_b32 {T(4)}, 1, {T(4)}\nv_xor_b32 {T(4)}, {T(4)}, {T(3)}")
        g(f"v_lshlrev_b32 {T(4)}, 4, {T(4)}\nv_lshl_add_u32 {v('D',t)}, {T(2)}, 9, {T(4)}")
    g(f"s_lshl_b32 {s('LB')}, {s('WAVE')}, 15")
    NS=g.cfg['NS']
    if g.cfg.get('lay'):
        g(f"s_lshl_b32 {s('WBASE')}, {s('MEM')}, 7\ns_add_u32 {s('WBASE')}, {s('WBASE')}, {s('WAVE')}\ns_lshl_b32 {s('WBASE')}, {s('WBASE')}, 13")
    else:
        g(f"s_mul_i32 {s('WBASE')}, {s('MEM')}, {NS*4}\ns_add_u32 {s('WBASE')}, {s('WBASE')}, {s('WAVE')}\ns_lshl_b32 {s('WBASE')}, {s('WBASE')}, 13")
    if g.cfg.get('rot'):
        g(f"s_mul_i32 {s('T7')}, s2, {g.cfg['rot']}\ns_and_b32 {s('T7')}, {s('T7')}, 0xfff")
        g(f"s_mul_i32 {s('T2')}, {s('T7')}, {(65536+NS-1)//NS}\ns_lshr_b32 {s('T2')}, {s('T2')}, 16\ns_mul_i32 {s('T2')}, {s('T2')}, {NS}\ns_sub_i32 {s('T7')}, {s('T7')}, {s('T2')}")
        g(f"s_cmp_lt_i32 {s('T7')}, 0\ns_cselect_b32 {s('T2')}, {NS}, 0\ns_add_u32 {s('T7')}, {s('T7')}, {s('T2')}\ns_lshl_b32 {s('T7')}, {s('T7')}, 15")

def stream_setup2(g):
    g.c("stream setup 2")
    L=v('LANE')
    g(f"v_and_b32 {T(0)}, 15, {L}\nv_lshrrev_b32 {T(1)}, 4, {L}")
    g(f"v_and_b32 {T(2)}, 1, {T(0)}\nv_lshlrev_b32 {T(2)}, 1, {T(2)}\nv_xor_b32 {T(2)}, {T(2)}, {T(1)}\nv_lshlrev_b32 {T(2)}, 4, {T(2)}")
    g(f"v_bfe_u32 {T(3)}, {T(0)}, 1, 2\nv_lshlrev_b32 {T(3)}, 6, {T(3)}")
    g(f"v_lshl_add_u32 {T(2)}, {T(0)}, 9, {T(2)}\nv_add_u32 {T(2)}, {T(2)}, {T(3)}")
    for sg in range(4):
        g(f"v_xor_b32 {v('KA',sg)}, {sg*64}, {T(2)}\nv_add_u32 {v('KA',sg)}, {s('LB')}, {v('KA',sg)}")
    g(f"v_lshrrev_b32 {T(2)}, 2, {T(0)}\nv_and_b32 {T(3)}, 3, {T(0)}\nv_lshl_add_u32 {T(2)}, {T(1)}, 2, {T(2)}")
    g(f"v_and_b32 {T(4)}, 7, {T(2)}\nv_lshlrev_b32 {T(4)}, 5, {T(4)}\nv_lshl_add_u32 {T(4)}, {T(2)}, 9, {T(4)}\nv_lshl_add_u32 {T(4)}, {T(3)}, 3, {T(4)}")
    for d in range(8):
        g(f"v_xor_b32 {v('VA',d)}, {d*32}, {T(4)}\nv_add_u32 {v('VA',d)}, {s('LB')}, {v('VA',d)}")
    for t8 in range(8):
        m=(3<<(2*t8))*0x00010001
        g(f"s_mov_b32 {s('MASK',1,2*t8)}, {m:#x}\ns_mov_b32 {s('MASK',1,2*t8+1)}, {m:#x}")
    g(f"v_mov_b32 {v('M')}, {f2u(-1e30):#x}\nv_mov_b32 {v('L')}, 0")
    for i in range(8): g(f"v_mov_b32 {v('O',i)}, 0")

def dma_list(slot, kv, pol):
    sr=s('SRDK',4) if kv==0 else s('SRDV',4)
    out=[]
    for t in range(8):
        pre=""
        if t%4==0: pre=f"s_add_u32 m0, {s('LB')}, {slot*SLOT+(t//4)*4096}\ns_nop 0\n"
        out.append(pre+f"buffer_load_dwordx4 {v('D',t%4)}, {sr}, {s('OFF') if t<4 else s('OFF4')} offen offset:{(t%4)*1024} {pol} lds")
    return out
def set_off_static(g, unit):
    if g.cfg.get('rot'):
        NS=g.cfg['NS']
        g(f"s_add_u32 {s('OFF')}, {s('T7')}, {unit*4*8192}\ns_sub_u32 {s('OFF4')}, {s('OFF')}, {NS*32768}\ns_cmp_ge_u32 {s('OFF')}, {NS*32768}\ns_cselect_b32 {s('OFF')}, {s('OFF4')}, {s('OFF')}")
        g(f"s_add_u32 {s('OFF')}, {s('OFF')}, {s('WBASE')}\ns_add_u32 {s('OFF4')}, {s('OFF')}, 4096")
        return
    g(f"s_add_u32 {s('OFF')}, {s('WBASE')}, {unit*4*8192}\ns_add_u32 {s('OFF4')}, {s('OFF')}, 4096")
def read_k(g, slot, dst):
    for st in range(8):
        g(f"ds_read_b128 {v(dst,4*st,4)}, {v('KA',st&3)} offset:{slot*SLOT+(st>>2)*256}")
def qk_list(src, sidx):
    return [f"v_mfma_f32_16x16x32_bf16 {v('SS',4*sidx,4)}, {v(src,4*st,4)}, {v('Q',4*st,4)}, {'0' if st==0 else v('SS',4*sidx,4)}" for st in range(8)]
def interleave(g,a,b):
    for i in range(max(len(a),len(b))):
        if i<len(a): g(a[i])
        if i<len(b): g(b[i])
def xlane(g, reg, op, t0, t1):
    for sw in ("v_permlane16_swap_b32","v_permlane32_swap_b32"):
        g(f"v_mov_b32 {t0}, {reg}\nv_mov_b32 {t1}, {reg}\ns_nop 1\n{sw} {t0}, {t1}\ns_nop 1\n{op} {reg}, {t0}, {t1}")
def softmax(g, nt):
    n=4*nt
    regs=[v('SS',i) for i in range(n)]
    g("s_nop 7")
    if g.cfg.get('sround',1):
        for i in range(0,n,2):
            t=T(6+(i//2)%4)
            g(f"v_cvt_pk_bf16_f32 {t}, {regs[i]}, {regs[i+1]}\nv_lshlrev_b32 {regs[i]}, 16, {t}\nv_and_b32 {regs[i+1]}, 0xffff0000, {t}")
    g(f"v_max3_f32 {T(0)}, {regs[0]}, {regs[1]}, {regs[2]}")
    i=3
    while i<n:
        if i+1<n: g(f"v_max3_f32 {T(0)}, {T(0)}, {regs[i]}, {regs[i+1]}"); i+=2
        else: g(f"v_max_f32 {T(0)}, {T(0)}, {regs[i]}"); i+=1
    xlane(g,T(0),"v_max_f32",T(1),T(2))
    g(f"v_mul_f32 {T(0)}, {s('CS')}, {T(0)}\nv_max_f32 {T(0)}, {T(0)}, {v('M')}")
    g(f"v_sub_f32 {T(1)}, {v('M')}, {T(0)}\nv_exp_f32 {T(1)}, {T(1)}\nv_mov_b32 {v('M')}, {T(0)}")
    for i in range(n): g(f"v_fma_f32 {regs[i]}, {regs[i]}, {s('CS')}, -{T(0)}")
    for i in range(n): g(f"v_exp_f32 {regs[i]}, {regs[i]}")
    g(f"v_mul_f32 {v('L')}, {v('L')}, {T(1)}")
    g(f"v_add_f32 {T(5)}, {regs[0]}, {regs[1]}")
    for i in range(2,n): g(f"v_add_f32 {T(5)}, {T(5)}, {regs[i]}")
    g(f"v_add_f32 {v('L')}, {v('L')}, {T(5)}")
    for i in range(8): g(f"v_mul_f32 {v('O',i)}, {v('O',i)}, {T(1)}")
    for t in range(nt):
        g(f"v_cvt_pk_bf16_f32 {v('SS',4*t)}, {regs[4*t]}, {regs[4*t+1]}")
        g(f"v_cvt_pk_bf16_f32 {v('SS',4*t+1)}, {regs[4*t+2]}, {regs[4*t+3]}")
def read_v(g, slot):
    for db in range(16):
        g(f"ds_read_b64_tr_b16 {v('VB',2*db,2)}, {v('VA',db&7)} offset:{slot*SLOT+(db>>3)*256}")
def mask_p(g, sidx):
    for t8 in range(8):
        for r in range(2):
            g(f"v_cndmask_b32 {v('A',2*t8+r)}, 0, {v('SS',4*sidx+r)}, {s('MASK',2,2*t8)}")
def pv_list():
    return [f"v_mfma_f32_16x16x16_bf16 {v('O',4*h,4)}, {v('VB',2*(8*h+t8),2)}, {v('A',2*t8,2)}, {v('O',4*h,4)}" for t8 in range(8) for h in range(2)]

def stream_waves(g, fused_q):
    cfg=g.cfg; NS=cfg['NS']; B=cfg['B']; pol=cfg.get('pol','nt'); Dm=cfg.get('D',1); D=cfg.get('Dh',Dm)
    cur=[D]
    NSB=NS-2
    assert NSB%B==0
    g.q=[]
    kfirst=cfg.get('kfirst',0)
    if fused_q and not kfirst: issue_wq_dma(g)
    stream_setup1(g)
    seq=[]
    for b in range(NSB//B):
        for kv in (0,1):
            for i in range(B): seq.append((kv,b*B+i,i,B))
    for n in (NSB,NSB+1):
        for kv in (0,1): seq.append((kv,n,0,1))
    def pace():
        n=8*(cur[0]-1)
        g(f"s_waitcnt vmcnt({n})")
        keep=[]; acc=0
        for x in reversed(g.q):
            if acc>=n: break
            keep.append(x); acc+=x[1]
        g.q=list(reversed(keep))
    def landed(tag): return all(t!=tag for t,_ in g.q)
    def issue(i, paced=True):
        if paced: pace()
        set_off_static(g,seq[i][1]); g.vm_issue(('t',i),8)
        return dma_list(i%4,seq[i][0],pol)
    for i in range(D):
        for x in issue(i,False): g(x)
    if fused_q and kfirst: issue_wq_dma(g)
    stream_setup2(g)
    if fused_q: g.vm_wait('wq')
    g("s_barrier")
    for i in range(D,4):
        for x in issue(i): g(x)
    get_tag(g)
    PD=min(cfg.get('predrain',2),B)
    bufs=['KB','KB2']
    for i in range(PD):
        if not landed(('t',i)): g.vm_wait(('t',i))
        read_k(g,i%4,bufs[i]); g("s_waitcnt lgkmcnt(0)")
        for x in issue(i+4): g(x)
    g.c("wait for q in LDS")
    lp=g.lab("Lq")
    g(f"v_mov_b32 {T(0)}, {L_QF}\ns_mov_b32 {s('SPIN')}, 0")
    g(f"{lp}:\nds_read_b32 {T(1)}, {T(0)}\ns_waitcnt lgkmcnt(0)\nv_readfirstlane_b32 {s('T0')}, {T(1)}")
    g(f"s_add_u32 {s('SPIN')}, {s('SPIN')}, 1\ns_cmp_gt_u32 {s('SPIN')}, {SPIN_MAX*8}\ns_cbranch_scc1 {lp}_x")
    g(f"s_cmp_eq_u32 {s('T0')}, 0\ns_cbranch_scc0 {lp}_x\ns_sleep 1\ns_branch {lp}\n{lp}_x:")
    g.stamp(1)
    cur[0]=Dm
    L=v('LANE')
    g(f"v_and_b32 {T(0)}, 1, {L}\nv_lshlrev_b32 {T(0)}, 9, {T(0)}\nv_lshrrev_b32 {T(1)}, 4, {L}\nv_lshl_add_u32 {T(0)}, {T(1)}, 4, {T(0)}\nv_add_u32 {T(0)}, {L_Q}, {T(0)}")
    for st in range(8): g(f"ds_read_b128 {v('Q',4*st,4)}, {T(0)} offset:{st*64}")
    g("s_waitcnt lgkmcnt(0)")
    for i in range(PD):
        for x in qk_list(bufs[i],i): g(x)
    if PD==B: softmax(g,B)
    def do_tile(kv, slot, ib, bb, dlist, pacefn):
        if kv==0:
            read_k(g,slot,'KB'); g("s_waitcnt lgkmcnt(0)")
            if dlist: pacefn()
            for x in dlist: g(x)
            for x in qk_list('KB',ib): g(x)
            if ib==bb-1: softmax(g,bb)
        else:
            read_v(g,slot); mask_p(g,ib); g("s_waitcnt lgkmcnt(0)")
            if dlist: pacefn()
            for x in dlist: g(x)
            for x in pv_list(): g(x)
    for i in range(PD,len(seq)-4):
        kv,u,ib,bb=seq[i]
        if not landed(('t',i)): g.vm_wait(('t',i))
        set_off_static(g,seq[i+4][1])
        def pf(i=i):
            pace(); g.vm_issue(('t',i+4),8)
        do_tile(kv,i%4,ib,bb,dma_list(i%4,seq[i+4][0],pol),pf)
    g.stamp(2)
    g.c("pool loop")
    g(f"s_mov_b32 {s('TKI')}, 0\ns_lshl_b32 {s('MBX')}, {s('WAVE')}, 5\ns_add_u32 {s('MBX')}, {s('MBX')}, {L_TK}")
    g(f"s_mov_b32 {s('NUNIT')}, {NS}")
    kn=g.kn
    DP=cfg.get('DP',Dm)
    pw=lambda: g(f"s_waitcnt vmcnt({8*(DP-1)})")
    g(f"L_pool0_{kn}:")
    for par in (0,1):
        lp=g.lab("Ltk")
        g(f"s_and_b32 {s('T0')}, {s('TKI')}, 7\ns_lshl_b32 {s('T0')}, {s('T0')}, 2\ns_add_u32 {s('T0')}, {s('T0')}, {s('MBX')}\nv_mov_b32 {T(6)}, {s('T0')}")
        g(f"s_add_u32 {s('TKI')}, {s('TKI')}, 1\ns_mov_b32 {s('SPIN')}, 0")
        g(f"{lp}:\nds_read_b32 {T(7)}, {T(6)}\ns_waitcnt lgkmcnt(0)\nv_readfirstlane_b32 {s('T0')}, {T(7)}")
        g(f"s_add_u32 {s('SPIN')}, {s('SPIN')}, 1\ns_cmp_gt_u32 {s('SPIN')}, {SPIN_MAX*8}\ns_cbranch_scc1 L_tail{par}_{kn}")
        g(f"s_lshr_b32 {s('T1')}, {s('T0')}, 12\ns_cmp_eq_u32 {s('T1')}, {s('TKI')}\ns_cbranch_scc0 {lp}")
        def req():
            g(f"s_lshl_b32 {s('T1')}, {s('WAVE')}, 2\ns_add_u32 {s('T1')}, {s('T1')}, {L_REQ}\nv_mov_b32 {T(6)}, {s('T1')}\nv_mov_b32 {T(7)}, {s('TKI')}\nds_write_b32 {T(6)}, {T(7)}")
        if not cfg.get('lateq'): req()
        g(f"s_and_b32 {s('T0')}, {s('T0')}, 0xfff\ns_cmp_eq_u32 {s('T0')}, {END_TK}\ns_cbranch_scc1 L_tail{par}_{kn}")
        lay=cfg.get('lay')
        PP=(32-NS)*4
        if lay==1:
            g(f"s_mul_i32 {s('T1')}, {s('T0')}, {(65536+PP-1)//PP}\ns_lshr_b32 {s('T1')}, {s('T1')}, 16\ns_mul_i32 {s('T2')}, {s('T1')}, {PP}\ns_sub_u32 {s('T0')}, {s('T0')}, {s('T2')}")
            g(f"s_lshl_b32 {s('T1')}, {s('T1')}, 7\ns_add_u32 {s('T0')}, {s('T0')}, {s('T1')}\ns_add_u32 {s('T0')}, {s('T0')}, {NS*4}\ns_lshl_b32 {s('OFF')}, {s('T0')}, 13\ns_add_u32 {s('OFF4')}, {s('OFF')}, 4096")
        elif lay==2:
            g(f"s_and_b32 {s('T1')}, {s('T0')}, 3\ns_lshr_b32 {s('T0')}, {s('T0')}, 2")
            g(f"s_lshl_b32 {s('T1')}, {s('T1')}, 7\ns_add_u32 {s('T0')}, {s('T0')}, {s('T1')}\ns_add_u32 {s('T0')}, {s('T0')}, {NS*4}\ns_lshl_b32 {s('OFF')}, {s('T0')}, 13\ns_add_u32 {s('OFF4')}, {s('OFF')}, 4096")
        else:
            g(f"s_add_u32 {s('T0')}, {s('T0')}, {NS*16}\ns_lshl_b32 {s('OFF')}, {s('T0')}, 13\ns_add_u32 {s('OFF4')}, {s('OFF')}, 4096")
        g(f"s_add_u32 {s('NUNIT')}, {s('NUNIT')}, 1")
        g("s_waitcnt vmcnt(24)")
        do_tile(0,2*par,0,1,dma_list(2*par,0,pol),pw)
        if cfg.get('lateq'): req()
        g("s_waitcnt vmcnt(24)")
        do_tile(1,2*par+1,0,1,dma_list(2*par+1,1,pol),pw)
    g(f"s_branch L_pool0_{kn}")
    for par in (0,1):
        g(f"L_tail{par}_{kn}:")
        g("s_waitcnt vmcnt(24)"); do_tile(0,2*par,0,1,[],None)
        g("s_waitcnt vmcnt(16)"); do_tile(1,2*par+1,0,1,[],None)
        g("s_waitcnt vmcnt(8)");  do_tile(0,2*(1-par),0,1,[],None)
        g("s_waitcnt vmcnt(0)");  do_tile(1,2*(1-par)+1,0,1,[],None)
        if par==0: g(f"s_branch L_sdone_{kn}")
    g(f"L_sdone_{kn}:")
    g.stamp(3)
    g.c("wave partial -> LDS")
    xlane(g,v('L'),"v_add_f32",T(1),T(2))
    L=v('LANE')
    g(f"v_lshlrev_b32 {T(0)}, 4, {L}\nv_add_u32 {T(0)}, {s('LB')}, {T(0)}")
    g(f"v_and_b32 {T(1)}, 1, {L}\nv_lshlrev_b32 {T(1)}, 3, {T(1)}\nv_add_u32 {T(1)}, {s('LB')}, {T(1)}")
    g(f"v_mov_b32 {T(2)}, {v('M')}\nv_mov_b32 {T(3)}, {v('L')}")
    g("s_nop 4")
    g(f"ds_write_b128 {T(0)}, {v('O',0,4)}\nds_write_b128 {T(0)}, {v('O',4,4)} offset:1024\nds_write_b64 {T(1)}, {T(2,2)} offset:2048")
    g("s_waitcnt lgkmcnt(0)\ns_barrier")
    X=V['X0']; KB=V['KB']
    g(f"s_and_b32 {s('T0')}, {s('WAVE')}, 1\ns_lshl_b32 {s('T0')}, {s('T0')}, 10\ns_lshr_b32 {s('T1')}, {s('WAVE')}, 1")
    g(f"v_bfe_u32 {T(0)}, {L}, 1, 2\nv_lshlrev_b32 {T(0)}, 8, {T(0)}\nv_lshrrev_b32 {T(1)}, 3, {L}\nv_lshl_add_u32 {T(0)}, {T(1)}, 5, {T(0)}")
    g(f"v_and_b32 {T(1)}, 1, {L}\nv_lshl_add_u32 {T(0)}, {T(1)}, 3, {T(0)}")
    g(f"s_lshl_b32 {s('T2')}, {s('T1')}, 4\ns_add_u32 {s('T2')}, {s('T2')}, {s('T0')}\nv_add_u32 {T(0)}, {s('T2')}, {T(0)}\nv_add_u32 {T(2)}, 65536, {T(0)}")
    g(f"s_lshl_b32 {s('T2')}, {s('T1')}, 3\nv_mov_b32 {T(1)}, {s('T2')}\nv_add_u32 {T(3)}, 65536, {T(1)}")
    for w in range(4):
        g(f"ds_read_b64 {R(KB+2*w,2)}, {T(0) if w<2 else T(2)} offset:{(w&1)*32768}")
        g(f"ds_read_b64 {R(KB+8+2*w,2)}, {T(1) if w<2 else T(3)} offset:{(w&1)*32768+2048}")
    g(f"v_lshlrev_b32 {T(4)}, 4, {L}")
    g(f"s_mul_i32 {s('T5')}, s2, {PGS}\ns_add_u32 {s('T5')}, {s('T5')}, {WS_PG}\ns_lshl_b32 {s('T1')}, {s('T1')}, 11\ns_add_u32 {s('T1')}, {s('T1')}, {s('T0')}\ns_add_u32 {s('T1')}, {s('T1')}, {s('T5')}")
    g("s_waitcnt lgkmcnt(0)")
    m=[R(KB+8+2*w) for w in range(4)]; l=[R(KB+9+2*w) for w in range(4)]
    mx=R(X); lt=R(X+2)
    g(f"v_max3_f32 {mx}, {m[0]}, {m[1]}, {m[2]}\nv_max_f32 {mx}, {mx}, {m[3]}")
    for w in range(4): g(f"v_sub_f32 {m[w]}, {m[w]}, {mx}")
    for w in range(4): g(f"v_exp_f32 {m[w]}, {m[w]}")
    g(f"v_mov_b32 {R(X+5)}, {s('TAG')}\nv_mov_b32 {R(X+7)}, {s('TAG')}")
    for r in range(2):
        o=R(X+4+2*r)
        g(f"v_mul_f32 {o}, {m[0]}, {R(KB+r)}")
        for w in range(1,4): g(f"v_fma_f32 {o}, {m[w]}, {R(KB+2*w+r)}, {o}")
    g(f"buffer_store_dwordx4 {R(X+4,4)}, {T(4)}, {s('SRDW',4)}, {s('T1')} offen {g.cfg.get('stf','sc1')}")
    l2=g.lab("Lnost")
    g(f"s_and_b32 {s('T0')}, {s('WAVE')}, 1\ns_cmp_lg_u32 {s('T0')}, 0\ns_cbranch_scc1 {l2}")
    g(f"v_mul_f32 {lt}, {m[0]}, {l[0]}")
    for w in range(1,4): g(f"v_fma_f32 {lt}, {m[w]}, {l[w]}, {lt}")
    g(f"v_mov_b32 {R(X+1)}, {s('TAG')}\nv_mov_b32 {R(X+3)}, {s('TAG')}\nv_mov_b32 {T(3)}, 0")
    g(f"s_lshl_b32 {s('T0')}, {s('WAVE')}, 3\ns_add_u32 {s('T5')}, {s('T5')}, {s('T0')}\ns_add_u32 {s('T5')}, {s('T5')}, 4096\ns_mov_b64 {s('EX',2)}, exec\ns_mov_b64 exec, 1")
    g(f"buffer_store_dwordx4 {R(X,4)}, {T(3)}, {s('SRDW',4)}, {s('T5')} offen {g.cfg.get('stf','sc1')}")
    g(f"s_mov_b64 exec, {s('EX',2)}")
    g(f"{l2}:")
    g.stamp(6)

def hop1_gather(g):
    g.c("hop1 gather")
    L=v('LANE'); X=V['X0']; KB=V['KB']; VB=V['VB']
    g(f"v_lshrrev_b32 {T(0)}, 4, {L}\nv_and_b32 {T(1)}, 15, {L}")
    g(f"v_and_b32 {T(3)}, 3, {T(1)}\nv_lshrrev_b32 {T(4)}, 2, {T(1)}")
    g(f"v_lshlrev_b32 {T(3)}, 5, {T(3)}\nv_add_u32 {T(3)}, {T(3)}, {T(4)}\nv_mul_u32_u24 {T(3)}, {PGS}, {T(3)}")
    g(f"v_mov_b32 {T(5)}, {T(3)}\nv_lshl_add_u32 {T(3)}, {T(0)}, 6, {T(3)}")
    g(f"s_lshl_b32 {s('T0')}, {s('BR')}, 5\ns_add_u32 {s('T0')}, {s('T0')}, {s('HKV')}\ns_mul_i32 {s('T0')}, {s('T0')}, {4*PGS}\ns_add_u32 {s('T0')}, {s('T0')}, {WS_PG}")
    g(f"s_lshl_b32 {s('T1')}, {s('C')}, 8\ns_add_u32 {s('T1')}, {s('T1')}, {s('T0')}")
    g(f"s_lshr_b32 {s('T2')}, {s('C')}, 3\ns_lshl_b32 {s('T2')}, {s('T2')}, 4\ns_add_u32 {s('T2')}, {s('T2')}, {s('T0')}\ns_add_u32 {s('T2')}, {s('T2')}, 4096")
    lp=g.lab("Lh1")
    if g.cfg.get('h1delay'): g(f"s_sleep {g.cfg['h1delay']}")
    g(f"s_mov_b32 {s('SPIN')}, 0")
    g(f"{lp}:")
    for n in range(4):
        g(f"buffer_load_dwordx4 {R(KB+4*n,4)}, {T(3)}, {s('SRDW',4)}, {s('T1')} offen offset:{16*n} {g.cfg.get('ldf','sc1')}")
    g(f"buffer_load_dwordx4 {R(KB+16,4)}, {T(5)}, {s('SRDW',4)}, {s('T2')} offen {g.cfg.get('ldf','sc1')}")
    g("s_waitcnt vmcnt(0)")
    g(f"v_xor_b32 {T(6)}, {s('TAG')}, {R(KB+1)}")
    for n in range(1,10):
        g(f"v_xor_b32 {T(7)}, {s('TAG')}, {R(KB+1+2*n)}\nv_or_b32 {T(6)}, {T(6)}, {T(7)}")
    g(f"v_cmp_ne_u32 vcc, 0, {T(6)}\ns_add_u32 {s('SPIN')}, {s('SPIN')}, 1\ns_cmp_gt_u32 {s('SPIN')}, {SPIN_MAX}\ns_cbranch_scc1 {lp}_x")
    g(f"s_cbranch_vccz {lp}_x\ns_sleep {g.cfg.get('h1sleep',2)}\ns_branch {lp}\n{lp}_x:")
    g.stamp(5)
    if g.cfg.get('stamps'): g(f"s_waitcnt lgkmcnt(0)\ns_mov_b32 s{S['ST']+16}, {s('SPIN')}\ns_mov_b32 s{S['ST']+17}, 0")
    M=R(KB+16); Lr=R(KB+18)
    def ror_red(reg,op,t):
        for n in (8,4):
            g(f"s_nop 1\nv_mov_b32_dpp {t}, {reg} row_ror:{n} row_mask:0xf bank_mask:0xf\n{op} {reg}, {reg}, {t}")
    g(f"v_mov_b32 {T(6)}, {M}")
    ror_red(T(6),"v_max_f32",T(7))
    g(f"v_sub_f32 {T(6)}, {M}, {T(6)}\nv_exp_f32 {T(6)}, {T(6)}\ns_nop 0\nv_mul_f32 {T(8)}, {T(6)}, {Lr}")
    ror_red(T(8),"v_add_f32",T(7))
    g(f"v_rcp_f32 {T(8)}, {T(8)}\ns_nop 0\nv_mul_f32 {T(6)}, {T(6)}, {T(8)}")
    for e in range(8): g(f"v_mul_f32 {R(KB+2*e)}, {R(KB+2*e)}, {T(6)}")
    for n in (8,4):
        g("s_nop 1")
        for e in range(8): g(f"v_mov_b32_dpp {R(VB+e)}, {R(KB+2*e)} row_ror:{n} row_mask:0xf bank_mask:0xf")
        for e in range(8): g(f"v_add_f32 {R(KB+2*e)}, {R(KB+2*e)}, {R(VB+e)}")
    for e in range(4): g(f"v_cvt_pk_bf16_f32 {R(X+e)}, {R(KB+4*e)}, {R(KB+4*e+2)}")
    g(f"v_lshlrev_b32 {T(0)}, 4, {L}\nv_add_u32 {T(0)}, {L_Q}, {T(0)}\nds_write_b128 {T(0)}, {R(X,4)}")
    g("s_waitcnt lgkmcnt(0)\ns_barrier")

def hop1_proj(g):
    g.c("hop1 projection")
    L=v('LANE'); X=V['X0']; Q=V['Q']; SS=V['SS']; A0=V['A']
    g(f"v_lshrrev_b32 {T(0)}, 4, {L}\nv_and_b32 {T(1)}, 15, {L}\nv_lshrrev_b32 {T(2)}, 2, {T(1)}\nv_and_b32 {T(3)}, 3, {T(1)}")
    g(f"v_lshl_add_u32 {T(2)}, {T(0)}, 3, {T(2)}\nv_mul_u32_u24 {T(2)}, 896, {T(2)}\nv_lshl_add_u32 {T(2)}, {T(3)}, 3, {T(2)}")
    g(f"s_mul_i32 {s('T0')}, {s('WAVE')}, {7*32}\ns_add_u32 {s('T0')}, {s('T0')}, {AUX}\nv_add_u32 {T(2)}, {s('T0')}, {T(2)}")
    for n in range(7):
        g(f"ds_read_b64_tr_b16 {R(Q+4*n,2)}, {T(2)} offset:{n*32}")
        g(f"ds_read_b64_tr_b16 {R(Q+4*n+2,2)}, {T(2)} offset:{n*32+4*896}")
    g(f"s_mul_i32 {s('T0')}, {s('BR')}, 28\ns_mul_i32 {s('T1')}, {s('WAVE')}, 7\ns_add_u32 {s('T0')}, {s('T0')}, {s('T1')}\ns_lshl_b32 {s('T0')}, {s('T0')}, 7")
    g(f"s_lshl_b32 {s('T1')}, {s('HKV')}, 4\ns_add_u32 {s('T1')}, {s('T1')}, {s('C')}\ns_add_u32 {s('T0')}, {s('T0')}, {s('T1')}\ns_lshl_b32 {s('T0')}, {s('T0')}, 9\ns_add_u32 {s('T0')}, {s('T0')}, {WS_OG}")
    g(f"v_lshrrev_b32 {T(4)}, 3, {T(1)}\nv_lshlrev_b32 {T(4)}, 16, {T(4)}\nv_lshl_add_u32 {T(4)}, {T(3)}, 7, {T(4)}\nv_lshl_add_u32 {T(4)}, {T(0)}, 5, {T(4)}")
    g(f"v_bfe_u32 {T(5)}, {T(1)}, 2, 1\nv_lshl_add_u32 {T(4)}, {T(5)}, 4, {T(4)}")
    for i in range(8): g(f"v_mov_b32 {R(A0+2*i+1)}, {s('TAG')}")
    g(f"s_mov_b32 {s('MASK',1,0)}, 0xf0f0f0f0\ns_mov_b32 {s('MASK',1,1)}, 0xf0f0f0f0\ns_mov_b32 {s('MASK',1,2)}, 0xff00ff00\ns_mov_b32 {s('MASK',1,3)}, 0xff00ff00")
    g(f"v_lshlrev_b32 {T(0)}, 4, {L}\nv_add_u32 {T(0)}, {L_Q}, {T(0)}")
    g("s_waitcnt lgkmcnt(0)\ns_barrier")
    g.stamp(4)
    g(f"ds_read_b128 {R(X,4)}, {T(0)}\ns_waitcnt lgkmcnt(0)")
    for n in range(7):
        g(f"v_mfma_f32_16x16x32_bf16 {R(SS+4*n,4)}, {R(Q+4*n,4)}, {R(X,4)}, 0")
    g("s_nop 1")
    mh=s('MASK',2,0); mc=s('MASK',2,2)
    for pr in range(4):
        n0=2*pr; n1=2*pr+1
        base=A0+4*pr
        if n1<7:
            for e in range(2):
                g(f"v_cndmask_b32 {T(6)}, {R(SS+4*n0+e)}, {R(SS+4*n0+2+e)}, {mh}\nv_cndmask_b32 {T(7)}, {R(SS+4*n1+e)}, {R(SS+4*n1+2+e)}, {mh}\nv_cndmask_b32 {R(base+2*e)}, {T(6)}, {T(7)}, {mc}")
        else:
            g("s_nop 4")
            for e in range(2):
                g(f"v_cndmask_b32 {R(base+2*e)}, {R(SS+4*n0+e)}, {R(SS+4*n0+2+e)}, {mh}")
            g(f"s_mov_b64 {s('EX',2)}, exec\ns_mov_b32 exec_lo, 0x00ff00ff\ns_mov_b32 exec_hi, 0x00ff00ff")
        g(f"buffer_store_dwordx4 {R(base,4)}, {T(4)}, {s('SRDW',4)}, {s('T0')} offen {g.cfg.get('stf','sc1')}")
        g(f"s_add_u32 {s('T0')}, {s('T0')}, 131072")
    g(f"s_mov_b64 exec, {s('EX',2)}")
    g.stamp(5)

def cw_init(g, do_cnt):
    g.c("CW init")
    L=v('LANE')
    g(f"v_lshlrev_b32 {T(0)}, 2, {L}\nv_add_u32 {T(0)}, {L_TK}, {T(0)}\nv_mov_b32 {T(1)}, 0\nds_write_b32 {T(0)}, {T(1)}")
    if do_cnt:
        l=g.lab("Lnc")
        g(f"s_cmp_lg_u32 {s('MEM')}, 0\ns_cbranch_scc1 {l}")
        g(f"s_lshl_b32 {s('T0')}, {s('TEAM')}, 8\ns_add_u32 {s('T0')}, {s('T0')}, {WS_CNT}\nv_mov_b32 {T(2)}, 0")
        g(f"s_mov_b64 {s('EX',2)}, exec\ns_mov_b64 exec, 1")
        g(f"buffer_store_dword {T(1)}, {T(2)}, {s('SRDW',4)}, {s('T0')} offen sc1")
        g(f"s_mov_b64 exec, {s('EX',2)}\n{l}:")

def cw_qproj_v2(g):
    L=v('LANE'); XR=V['Q']
    g.c("x operand loads")
    srd(g,'SRDA','X',4*896)
    g(f"v_and_b32 {T(0)}, 3, {L}\nv_mul_u32_u24 {T(0)}, 896, {T(0)}\nv_lshrrev_b32 {T(1)}, 4, {L}\nv_lshl_add_u32 {T(0)}, {T(1)}, 4, {T(0)}")
    g(f"s_and_b32 {s('T0')}, {s('C')}, 1\ns_mul_i32 {s('T0')}, {s('T0')}, 448")
    for st in range(7):
        g(f"buffer_load_dwordx4 {R(XR+4*st,4)}, {T(0)}, {s('SRDA',4)}, {s('T0')} offen offset:{st*64} {g.cfg.get('xpol','nt')}")
    g("s_waitcnt lgkmcnt(0)\ns_barrier")
    g.stamp(1)
    g(f"v_and_b32 {T(2)}, 15, {L}\nv_lshrrev_b32 {T(3)}, 2, {T(2)}\nv_and_b32 {T(4)}, 3, {T(2)}")
    g(f"v_lshl_add_u32 {T(3)}, {T(1)}, 3, {T(3)}\nv_lshlrev_b32 {T(3)}, 7, {T(3)}\nv_lshl_add_u32 {T(3)}, {T(4)}, 3, {T(3)}\nv_add_u32 {T(3)}, {AUX}, {T(3)}")
    AB=V['KB']
    D=V['O']
    for cb in range(4):
        for st in range(7):
            g(f"ds_read_b64_tr_b16 {R(AB+28*cb+4*st,2)}, {T(3)} offset:{st*4096+cb*32}")
            g(f"ds_read_b64_tr_b16 {R(AB+28*cb+4*st+2,2)}, {T(3)} offset:{st*4096+cb*32+512}")
    g(f"v_lshlrev_b32 {T(5)}, 16, {T(4)}\nv_lshrrev_b32 {T(6)}, 3, {T(2)}\nv_lshl_add_u32 {T(5)}, {T(6)}, 7, {T(5)}\nv_lshl_add_u32 {T(5)}, {T(1)}, 5, {T(5)}\nv_bfe_u32 {T(6)}, {T(2)}, 2, 1\nv_lshl_add_u32 {T(5)}, {T(6)}, 4, {T(5)}")
    g(f"s_lshl_b32 {s('T0')}, {s('BR')}, 5\ns_add_u32 {s('T0')}, {s('T0')}, {s('HKV')}\ns_lshl_b32 {s('T0')}, {s('T0')}, 13\ns_add_u32 {s('T0')}, {s('T0')}, {WS_QG}")
    g(f"s_and_b32 {s('T1')}, {s('C')}, 1\ns_lshl_b32 {s('T1')}, {s('T1')}, 12\ns_add_u32 {s('T0')}, {s('T0')}, {s('T1')}\ns_lshr_b32 {s('T1')}, {s('C')}, 1\ns_lshl_b32 {s('T1')}, {s('T1')}, 9\ns_add_u32 {s('T0')}, {s('T0')}, {s('T1')}")
    g(f"s_mov_b32 {s('MASK',1,0)}, 0xf0f0f0f0\ns_mov_b32 {s('MASK',1,1)}, 0xf0f0f0f0\ns_mov_b32 {s('MASK',1,2)}, 0xff00ff00\ns_mov_b32 {s('MASK',1,3)}, 0xff00ff00")
    get_tag(g)
    g(f"v_mov_b32 {T(9)}, {s('TAG')}\nv_mov_b32 {T(11)}, {s('TAG')}\nv_mov_b32 {T(13)}, {s('TAG')}\nv_mov_b32 {T(15)}, {s('TAG')}")
    g("s_waitcnt vmcnt(0) lgkmcnt(0)")
    g.stamp(9)
    for st in range(7):
        for cb in range(4):
            g(f"v_mfma_f32_16x16x32_bf16 {R(D+4*cb,4)}, {R(AB+28*cb+4*st,4)}, {R(XR+4*st,4)}, {'0' if st==0 else R(D+4*cb,4)}")
    g("s_nop 7")
    mh=s('MASK',2,0); mc=s('MASK',2,2)
    for pr in range(2):
        n0=2*pr; n1=2*pr+1; base=V['T']+8+4*pr
        for e in range(2):
            g(f"v_cndmask_b32 {T(6)}, {R(D+4*n0+e)}, {R(D+4*n0+2+e)}, {mh}\nv_cndmask_b32 {T(7)}, {R(D+4*n1+e)}, {R(D+4*n1+2+e)}, {mh}\nv_cndmask_b32 {R(base+2*e)}, {T(6)}, {T(7)}, {mc}")
        g(f"buffer_store_dwordx4 {R(base,4)}, {T(5)}, {s('SRDW',4)}, {s('T0')} offen offset:{pr*256} sc1")
    g.stamp(2)

def cw_qrecv_v2(g):
    g.c("receive q")
    L=v('LANE'); KB=V['KB']
    g(f"v_lshlrev_b32 {T(0)}, 6, {L}")
    g(f"s_lshl_b32 {s('T0')}, {s('TEAM')}, 13\ns_add_u32 {s('T0')}, {s('T0')}, {WS_QG}\ns_add_u32 {s('T1')}, {s('T0')}, 4096")
    lp=g.lab("Lqr")
    if g.cfg.get('qdelay'): g(f"s_sleep {g.cfg['qdelay']}")
    g(f"s_mov_b32 {s('SPIN')}, 0\n{lp}:")
    for k in range(2):
        for n in range(4):
            g(f"buffer_load_dwordx4 {R(KB+16*k+4*n,4)}, {T(0)}, {s('SRDW',4)}, {s('T0') if k==0 else s('T1')} offen offset:{16*n} sc1")
    g("s_waitcnt vmcnt(0)")
    g(f"v_xor_b32 {T(1)}, {s('TAG')}, {R(KB+1)}")
    for n in range(1,16): g(f"v_xor_b32 {T(2)}, {s('TAG')}, {R(KB+1+2*n)}\nv_or_b32 {T(1)}, {T(1)}, {T(2)}")
    g(f"v_cmp_ne_u32 vcc, 0, {T(1)}\ns_add_u32 {s('SPIN')}, {s('SPIN')}, 1\ns_cmp_gt_u32 {s('SPIN')}, {SPIN_MAX}\ns_cbranch_scc1 {lp}_x")
    g(f"s_cbranch_vccz {lp}_x\ns_sleep {g.cfg.get('qsleep',2)}\ns_branch {lp}\n{lp}_x:")
    for e in range(8): g(f"v_add_f32 {R(KB+2*e)}, {R(KB+2*e)}, {R(KB+16+2*e)}")
    for e in range(4): g(f"v_cvt_pk_bf16_f32 {T(4+e)}, {R(KB+4*e)}, {R(KB+4*e+2)}")
    g(f"v_lshlrev_b32 {T(0)}, 4, {L}\nv_add_u32 {T(0)}, {L_Q}, {T(0)}\nds_write_b128 {T(0)}, {T(4,4)}")
    g("s_waitcnt lgkmcnt(0)")
    g(f"v_mov_b32 {T(0)}, {L_QF}\nv_mov_b32 {T(1)}, 1\nds_write_b32 {T(0)}, {T(1)}")
    g.stamp(3)

def issue_wq_dma_v1(g):
    g.c("wq slice DMA (7 x 1KB per wave): 448 rows x 64 B")
    srd(g,'SRDA','WQ',448*8192)
    L=v('LANE')
    g(f"v_lshrrev_b32 {T(0)}, 2, {L}\nv_lshlrev_b32 {T(0)}, 13, {T(0)}")
    g(f"v_and_b32 {T(1)}, 3, {L}\nv_lshl_add_u32 {T(0)}, {T(1)}, 4, {T(0)}")
    g(f"s_lshl_b32 {s('T0')}, {s('HKV')}, 10\ns_lshl_b32 {s('T1')}, {s('C')}, 6\ns_add_u32 {s('T0')}, {s('T0')}, {s('T1')}")
    g(f"s_mul_i32 {s('T1')}, {s('WAVE')}, {7*131072}\ns_add_u32 {s('T0')}, {s('T0')}, {s('T1')}")
    g(f"s_mul_i32 {s('T1')}, {s('WAVE')}, {7*1024}\ns_add_u32 {s('T1')}, {s('T1')}, {AUX}")
    for n in range(7):
        g(f"s_mov_b32 m0, {s('T1')}\ns_add_u32 {s('T1')}, {s('T1')}, 1024")
        g(f"buffer_load_dwordx4 {T(0)}, {s('SRDA',4)}, {s('T0')} offen {g.cfg.get('wqpol','nt')} lds")
        g(f"s_add_u32 {s('T0')}, {s('T0')}, 131072")
    g.vm_issue('wq',7)

def cw_qproj_v1(g):
    L=v('LANE'); XR=V['Q']
    g.c("x operand loads")
    srd(g,'SRDA','X',4*896)
    g(f"v_and_b32 {T(0)}, 3, {L}\nv_mul_u32_u24 {T(0)}, 896, {T(0)}\nv_lshrrev_b32 {T(1)}, 4, {L}\nv_lshl_add_u32 {T(0)}, {T(1)}, 4, {T(0)}")
    for st in range(14):
        g(f"buffer_load_dwordx4 {R(XR+4*st,4)}, {T(0)}, {s('SRDA',4)}, 0 offen offset:{st*64} {g.cfg.get('xpol','nt')}")
    g("s_waitcnt lgkmcnt(0)\ns_barrier")
    g.stamp(1)
    g(f"v_and_b32 {T(2)}, 15, {L}\nv_lshrrev_b32 {T(3)}, 2, {T(2)}\nv_and_b32 {T(4)}, 3, {T(2)}")
    g(f"v_lshl_add_u32 {T(3)}, {T(1)}, 3, {T(3)}\nv_lshlrev_b32 {T(3)}, 6, {T(3)}\nv_lshl_add_u32 {T(3)}, {T(4)}, 3, {T(3)}\nv_add_u32 {T(3)}, {AUX}, {T(3)}")
    AB=V['QA']
    D=V['O']
    for cb in range(2):
        for st in range(14):
            g(f"ds_read_b64_tr_b16 {R(AB+56*cb+4*st,2)}, {T(3)} offset:{st*2048+cb*32}")
            g(f"ds_read_b64_tr_b16 {R(AB+56*cb+4*st+2,2)}, {T(3)} offset:{st*2048+cb*32+256}")
    g(f"v_lshlrev_b32 {T(5)}, 16, {T(4)}\nv_bfe_u32 {T(6)}, {T(2)}, 2, 1\nv_lshl_add_u32 {T(5)}, {T(6)}, 6, {T(5)}\nv_lshl_add_u32 {T(5)}, {T(1)}, 4, {T(5)}")
    g(f"s_lshl_b32 {s('T0')}, {s('BR')}, 5\ns_add_u32 {s('T0')}, {s('T0')}, {s('HKV')}\ns_lshl_b32 {s('T0')}, {s('T0')}, 13\ns_add_u32 {s('T0')}, {s('T0')}, {WS_QG}")
    g(f"s_lshl_b32 {s('T1')}, {s('C')}, 7\ns_add_u32 {s('T0')}, {s('T0')}, {s('T1')}")
    g(f"s_mov_b32 {s('MASK',1,0)}, 0xf0f0f0f0\ns_mov_b32 {s('MASK',1,1)}, 0xf0f0f0f0")
    get_tag(g)
    g(f"v_mov_b32 {T(9)}, {s('TAG')}\nv_mov_b32 {T(11)}, {s('TAG')}")
    g("s_waitcnt vmcnt(0) lgkmcnt(0)")
    g.stamp(9)
    for st in range(14):
        for cb in range(2):
            g(f"v_mfma_f32_16x16x32_bf16 {R(D+4*cb,4)}, {R(AB+56*cb+4*st,4)}, {R(XR+4*st,4)}, {'0' if st==0 else R(D+4*cb,4)}")
    g("s_nop 7")
    mh=s('MASK',2,0)
    for cb in range(2):
        g(f"v_cvt_pk_bf16_f32 {T(12+2*cb)}, {R(D+4*cb)}, {R(D+4*cb+1)}\nv_cvt_pk_bf16_f32 {T(13+2*cb)}, {R(D+4*cb+2)}, {R(D+4*cb+3)}")
    g(f"v_cndmask_b32 {T(8)}, {T(12)}, {T(14)}, {mh}\nv_cndmask_b32 {T(10)}, {T(13)}, {T(15)}, {mh}")
    g(f"s_mov_b64 {s('EX',2)}, exec\ns_mov_b32 exec_lo, 0x00ff00ff\ns_mov_b32 exec_hi, 0x00ff00ff")
    g(f"buffer_store_dwordx4 {T(8,4)}, {T(5)}, {s('SRDW',4)}, {s('T0')} offen sc1")
    g(f"s_mov_b64 exec, {s('EX',2)}")
    g.stamp(2)

def cw_qrecv_v1(g):
    g.c("receive q")
    L=v('LANE'); KB=V['KB']
    g(f"v_lshlrev_b32 {T(0)}, 5, {L}")
    g(f"s_lshl_b32 {s('T0')}, {s('TEAM')}, 13\ns_add_u32 {s('T0')}, {s('T0')}, {WS_QG}")
    lp=g.lab("Lqr")
    if g.cfg.get('qdelay'): g(f"s_sleep {g.cfg['qdelay']}")
    g(f"s_mov_b32 {s('SPIN')}, 0\n{lp}:")
    g(f"buffer_load_dwordx4 {R(KB,4)}, {T(0)}, {s('SRDW',4)}, {s('T0')} offen sc1")
    g(f"buffer_load_dwordx4 {R(KB+4,4)}, {T(0)}, {s('SRDW',4)}, {s('T0')} offen offset:16 sc1")
    g("s_waitcnt vmcnt(0)")
    g(f"v_xor_b32 {T(1)}, {s('TAG')}, {R(KB+1)}")
    for n in range(1,4): g(f"v_xor_b32 {T(2)}, {s('TAG')}, {R(KB+1+2*n)}\nv_or_b32 {T(1)}, {T(1)}, {T(2)}")
    g(f"v_cmp_ne_u32 vcc, 0, {T(1)}\ns_add_u32 {s('SPIN')}, {s('SPIN')}, 1\ns_cmp_gt_u32 {s('SPIN')}, {SPIN_MAX}\ns_cbranch_scc1 {lp}_x")
    g(f"s_cbranch_vccz {lp}_x\ns_sleep {g.cfg.get('qsleep',2)}\ns_branch {lp}\n{lp}_x:")
    g(f"v_mov_b32 {T(4)}, {R(KB)}\nv_mov_b32 {T(5)}, {R(KB+2)}\nv_mov_b32 {T(6)}, {R(KB+4)}\nv_mov_b32 {T(7)}, {R(KB+6)}")
    g(f"v_lshlrev_b32 {T(0)}, 4, {L}\nv_add_u32 {T(0)}, {L_Q}, {T(0)}\nds_write_b128 {T(0)}, {T(4,4)}")
    g("s_waitcnt lgkmcnt(0)")
    g(f"v_mov_b32 {T(0)}, {L_QF}\nv_mov_b32 {T(1)}, 1\nds_write_b32 {T(0)}, {T(1)}")
    g.stamp(3)

def issue_wq_dma(g): (issue_wq_dma_v2 if g.cfg.get('qv')==2 else issue_wq_dma_v1)(g)
def cw_qproj(g): (cw_qproj_v2 if g.cfg.get('qv')==2 else cw_qproj_v1)(g)
def cw_qrecv(g): (cw_qrecv_v2 if g.cfg.get('qv')==2 else cw_qrecv_v1)(g)

def cw_wo_dma(g):
    g.c("wo slice DMA -> AUX")
    L=v('LANE')
    srd(g,'SRDA','WO',4096*896)
    g(f"v_lshlrev_b32 {T(0)}, 4, {L}")
    g(f"s_lshl_b32 {s('T0')}, {s('HKV')}, 9\ns_lshl_b32 {s('T1')}, {s('C')}, 5\ns_add_u32 {s('T0')}, {s('T0')}, {s('T1')}\ns_mul_i32 {s('T0')}, {s('T0')}, 896")
    g(f"s_mov_b32 {s('T1')}, {AUX}")
    for n in range(28):
        g(f"s_mov_b32 m0, {s('T1')}\ns_add_u32 {s('T1')}, {s('T1')}, 1024")
        g(f"buffer_load_dwordx4 {T(0)}, {s('SRDA',4)}, {s('T0')} offen nt lds")
        g(f"s_add_u32 {s('T0')}, {s('T0')}, 1024")

def cw_pretouch(g):
    g.c("pretouch")
    if g.cfg.get('ptstag'):
        l=g.lab("Lstag")
        g(f"s_and_b32 {s('T0')}, s2, 31\n{l}:\ns_sleep {g.cfg['ptstag']}\ns_sub_u32 {s('T0')}, {s('T0')}, 1\ns_cmp_ge_i32 {s('T0')}, 0\ns_cbranch_scc1 {l}")
    L=v('LANE'); mode=g.cfg.get('pretouch'); pp=g.cfg.get('ptpol','')
    if mode==3:
        g(f"s_mul_i32 {s('T5')}, s2, {PGS}\ns_add_u32 {s('T5')}, {s('T5')}, {WS_PG}")
        g(f"s_add_u32 s46, {s('WS')}, {s('T5')}\ns_addc_u32 s47, {s('WS',1,1)}, 0")
        for i in range(33): g(f"s_load_dword {s('T6')}, s[46:47], {i*128}")
        g(f"s_mul_i32 {s('T0')}, {s('BR')}, 28\ns_lshl_b32 {s('T0')}, {s('T0')}, 7")
        g(f"s_lshl_b32 {s('T1')}, {s('HKV')}, 4\ns_add_u32 {s('T1')}, {s('T1')}, {s('C')}\ns_add_u32 {s('T0')}, {s('T0')}, {s('T1')}\ns_lshl_b32 {s('T0')}, {s('T0')}, 9\ns_add_u32 {s('T0')}, {s('T0')}, {WS_OG}")
        for half in range(2):
            g(f"s_add_u32 s46, {s('WS')}, {s('T0')}\ns_addc_u32 s47, {s('WS',1,1)}, 0")
            for n in range(14):
                for q in range(4): g(f"s_load_dword {s('T6')}, s[46:47], {n*65536+q*128}")
            g(f"s_add_u32 {s('T0')}, {s('T0')}, {14*65536}")
        g("s_waitcnt lgkmcnt(0)")
        return
    g(f"s_not_b32 {s('T0')}, {s('TAG')}")
    for i in range(4): g(f"v_mov_b32 {T(4+i)}, {s('T0')}")
    g(f"v_lshlrev_b32 {T(0)}, 4, {L}")
    g(f"s_mul_i32 {s('T5')}, s2, {PGS}\ns_add_u32 {s('T5')}, {s('T5')}, {WS_PG}")
    KB=V['KB']
    def op(i,addr,so,off=0):
        if mode==1: g(f"buffer_store_dwordx4 {T(4,4)}, {addr}, {s('SRDW',4)}, {so} offen offset:{off} sc1")
        else: g(f"buffer_load_dwordx4 {R(KB+4*i,4)}, {addr}, {s('SRDW',4)}, {so} offen offset:{off} {pp}")
    for i in range(4): op(i,T(0),s('T5'),i*1024)
    g(f"s_add_u32 {s('T5')}, {s('T5')}, 4096\ns_mov_b64 exec, 3")
    op(4,T(0),s('T5'))
    g("s_mov_b64 exec, -1")
    g(f"v_lshrrev_b32 {T(1)}, 5, {L}\nv_lshlrev_b32 {T(1)}, 16, {T(1)}\nv_and_b32 {T(2)}, 31, {L}\nv_lshl_add_u32 {T(1)}, {T(2)}, 4, {T(1)}")
    g(f"s_mul_i32 {s('T0')}, {s('BR')}, 28\ns_lshl_b32 {s('T0')}, {s('T0')}, 7")
    g(f"s_lshl_b32 {s('T1')}, {s('HKV')}, 4\ns_add_u32 {s('T1')}, {s('T1')}, {s('C')}\ns_add_u32 {s('T0')}, {s('T0')}, {s('T1')}\ns_lshl_b32 {s('T0')}, {s('T0')}, 9\ns_add_u32 {s('T0')}, {s('T0')}, {WS_OG}")
    for i in range(14):
        op(5+i,T(1),s('T0')); g(f"s_add_u32 {s('T0')}, {s('T0')}, 131072")

def cw_tickets(g):
    g.c("ticket service")
    NS=g.cfg['NS']; POOL=(32-NS)*16; kn=g.kn; L=v('LANE')
    g(f"v_mov_b32 {T(0)}, 0")
    g(f"s_lshl_b32 {s('T0')}, {s('TEAM')}, 8\ns_add_u32 {s('T0')}, {s('T0')}, {WS_CNT}\nv_mov_b32 {T(1)}, {s('T0')}")
    g(f"v_lshlrev_b32 {T(2)}, 2, {L}\nv_add_u32 {T(2)}, {L_REQ}, {T(2)}")
    g(f"v_lshlrev_b32 {T(3)}, 5, {L}\nv_add_u32 {T(3)}, {L_TK}, {T(3)}")
    g(f"s_mov_b64 {s('ACT',2)}, 0xf\ns_mov_b32 {s('SPIN')}, 0")
    g(f"L_twl_{kn}:")
    g(f"s_mov_b64 exec, {s('ACT',2)}")
    g(f"s_add_u32 {s('SPIN')}, {s('SPIN')}, 1\ns_cmp_gt_u32 {s('SPIN')}, {SPIN_MAX*4}\ns_cbranch_scc1 L_twe_{kn}")
    g(f"ds_read_b32 {T(4)}, {T(2)}\ns_waitcnt lgkmcnt(0)\nv_add_u32 {T(4)}, 1, {T(4)}")
    g(f"v_cmp_lt_u32 vcc, {T(0)}, {T(4)}\ns_nop 1\ns_and_b64 exec, exec, vcc\ns_cbranch_execz L_tws_{kn}")
    g(f"v_mov_b32 {T(5)}, 1\nbuffer_atomic_add {T(5)}, {T(1)}, {s('SRDW',4)}, 0 offen sc0 sc1\ns_waitcnt vmcnt(0)")
    g(f"v_cmp_gt_u32 vcc, {POOL}, {T(5)}\nv_mov_b32 {T(6)}, {END_TK}\ns_nop 1\nv_cndmask_b32 {T(6)}, {T(6)}, {T(5)}, vcc")
    g(f"v_and_b32 {T(7)}, 7, {T(0)}\nv_lshl_add_u32 {T(7)}, {T(7)}, 2, {T(3)}\nv_add_u32 {T(0)}, 1, {T(0)}\nv_lshl_or_b32 {T(6)}, {T(0)}, 12, {T(6)}")
    g(f"ds_write_b32 {T(7)}, {T(6)}")
    g(f"v_cmp_le_u32 vcc, {POOL}, {T(5)}\ns_nop 1\ns_andn2_b64 {s('ACT',2)}, {s('ACT',2)}, vcc")
    g(f"s_cmp_eq_u64 {s('ACT',2)}, 0\ns_cbranch_scc1 L_twe_{kn}\ns_branch L_twl_{kn}")
    g(f"L_tws_{kn}:\ns_sleep 2\ns_branch L_twl_{kn}")
    g(f"L_twe_{kn}:\ns_mov_b64 exec, -1\ns_waitcnt vmcnt(0) lgkmcnt(0)")

def hop2(g):
    g.c("hop2")
    L=v('LANE'); KB=V['KB']; kn=g.kn
    g(f"s_cmp_ge_u32 {s('WL')}, 112\ns_cbranch_scc1 L_fin_{kn}")
    g(f"v_lshrrev_b32 {T(0)}, 3, {L}\nv_lshlrev_b32 {T(0)}, 9, {T(0)}\nv_and_b32 {T(1)}, 7, {L}\nv_lshl_add_u32 {T(0)}, {T(1)}, 4, {T(0)}")
    g(f"s_mul_i32 {s('T0')}, {s('BR')}, 28\ns_lshr_b32 {s('T1')}, {s('WL')}, 2\ns_add_u32 {s('T0')}, {s('T0')}, {s('T1')}\ns_lshl_b32 {s('T0')}, {s('T0')}, 16")
    g(f"s_and_b32 {s('T2')}, {s('WL')}, 3\ns_lshl_b32 {s('T2')}, {s('T2')}, 7\ns_add_u32 {s('T0')}, {s('T0')}, {s('T2')}\ns_add_u32 {s('T0')}, {s('T0')}, {WS_OG}")
    lp=g.lab("Lh2")
    if g.cfg.get('h2delay'): g(f"s_sleep {g.cfg['h2delay']}")
    g(f"s_mov_b32 {s('SPIN')}, 0\n{lp}:\ns_mov_b32 {s('T5')}, {s('T0')}")
    for i in range(16):
        g(f"buffer_load_dwordx4 {R(KB+4*i,4)}, {T(0)}, {s('SRDW',4)}, {s('T5')} offen sc1\ns_add_u32 {s('T5')}, {s('T5')}, 4096")
    g("s_waitcnt vmcnt(0)")
    g(f"v_xor_b32 {T(2)}, {s('TAG')}, {R(KB+1)}")
    for n in range(1,32): g(f"v_xor_b32 {T(3)}, {s('TAG')}, {R(KB+1+2*n)}\nv_or_b32 {T(2)}, {T(2)}, {T(3)}")
    g(f"v_cmp_ne_u32 vcc, 0, {T(2)}\ns_add_u32 {s('SPIN')}, {s('SPIN')}, 1\ns_cmp_gt_u32 {s('SPIN')}, {SPIN_MAX}\ns_cbranch_scc1 {lp}_x")
    g(f"s_cbranch_vccz {lp}_x\ns_sleep 2\ns_branch {lp}\n{lp}_x:")
    g.stamp(6)
    if g.cfg.get('stamps'): g(f"s_mov_b32 s{S['ST']+18}, {s('SPIN')}\ns_mov_b32 s{S['ST']+19}, 0")
    g(f"v_mov_b32 {T(4)}, {R(KB)}\nv_mov_b32 {T(5)}, {R(KB+2)}")
    for i in range(1,16): g(f"v_add_f32 {T(4)}, {T(4)}, {R(KB+4*i)}\nv_add_f32 {T(5)}, {T(5)}, {R(KB+4*i+2)}")
    for rg in (T(4),T(5)):
        g(f"s_nop 1\nv_mov_b32_dpp {T(6)}, {rg} row_ror:8 row_mask:0xf bank_mask:0xf\nv_add_f32 {rg}, {rg}, {T(6)}")
        xlane(g,rg,"v_add_f32",T(6),T(7))
    g(f"v_cvt_pk_bf16_f32 {T(4)}, {T(4)}, {T(5)}")
    srd(g,'SRDA','OUT',4*896*2)
    g(f"v_lshlrev_b32 {T(6)}, 2, {T(1)}")
    g(f"s_mul_i32 {s('T0')}, {s('BR')}, 448\ns_lshr_b32 {s('T1')}, {s('WL')}, 2\ns_lshl_b32 {s('T1')}, {s('T1')}, 4\ns_add_u32 {s('T0')}, {s('T0')}, {s('T1')}\ns_lshl_b32 {s('T0')}, {s('T0')}, 1")
    g(f"s_and_b32 {s('T1')}, {s('WL')}, 3\ns_mul_i32 {s('T1')}, {s('T1')}, {896*2}\ns_add_u32 {s('T0')}, {s('T0')}, {s('T1')}")
    g(f"s_mov_b64 exec, 0xff")
    g(f"buffer_store_dword {T(4)}, {T(6)}, {s('SRDA',4)}, {s('T0')} offen")
    g(f"s_cmp_lg_u32 {s('WL')}, 0\ns_cbranch_scc1 L_fin_{kn}")
    g(f"s_add_u32 {s('T0')}, {s('E')}, 1\nv_mov_b32 {T(8)}, {s('T0')}\ns_lshl_b32 {s('T1')}, {s('BR')}, 8\nv_mov_b32 {T(9)}, {s('T1')}\ns_mov_b64 exec, 1")
    g(f"buffer_store_dword {T(8)}, {T(9)}, {s('SRDW',4)}, 0 offen offset:{WS_E}")

def dbg_stamps(g):
    g("s_mov_b64 exec, -1\ns_waitcnt lgkmcnt(0)")
    g("s_load_dwordx2 s[46:47], s[0:1], 88\ns_waitcnt lgkmcnt(0)")
    g(f"s_mov_b32 {s('SRDA',1,0)}, s46\ns_mov_b32 {s('SRDA',1,1)}, s47\ns_mov_b32 {s('SRDA',1,2)}, 256\ns_mov_b32 {s('SRDA',1,3)}, 0x20000")
    g(f"v_mov_b32 {T(0)}, 0\ns_mov_b64 exec, 1")
    for i in range(8):
        g(f"v_mov_b32 {T(4)}, s{S['ST']+2*i}\nbuffer_atomic_umax {T(4)}, {T(0)}, {s('SRDA',4)}, 0 offen offset:{4*i} sc1\ns_nop 1")
    g(f"s_not_b32 {s('T0')}, s{S['ST']}\nv_mov_b32 {T(4)}, {s('T0')}\nbuffer_atomic_umax {T(4)}, {T(0)}, {s('SRDA',4)}, 0 offen offset:40 sc1")

def write_stamps(g, wave_sel):
    if not g.cfg.get('stamps'): return
    g("s_mov_b64 exec, -1\ns_waitcnt lgkmcnt(0)")
    g(f"s_mul_i32 {s('T0')}, s2, 160\ns_add_u32 {s('T0')}, {s('T0')}, {WS_STAMP+wave_sel*65536}\nv_mov_b32 {T(0)}, 0\ns_mov_b64 exec, 1")
    for i in range(0,20,4):
        for k in range(4): g(f"v_mov_b32 {T(4+k)}, s{S['ST']+i+k}")
        g(f"buffer_store_dwordx4 {T(4,4)}, {T(0)}, {s('SRDW',4)}, {s('T0')} offen offset:{i*4}\ns_nop 1")

def kernel(g, kn, sections):
    g.kn=kn
    g(f".text\n.globl {kn}\n.p2align 8\n.type {kn},@function\n{kn}:")
    if g.cfg.get('stamps'):
        for i in range(20): g(f"s_mov_b32 s{S['ST']+i}, 0")
    prologue(g)
    g(f"s_cmp_eq_u32 {s('WAVE')}, 4\ns_cbranch_scc1 L_cw_{kn}")
    st='stream' in sections; qp='qproj' in sections
    if st:
        stream_waves(g, qp)
    else:
        if qp:
            g.q=[]; issue_wq_dma(g); g.vm_wait('wq'); g("s_barrier")
        get_tag(g)
        if 'hop1' in sections: g("s_barrier")
    if 'hop1' in sections: hop1_proj(g)
    if g.cfg.get('stamps'):
        g.stamp(7)
        l=g.lab("Lst"); g(f"s_cmp_lg_u32 {s('WAVE')}, 0\ns_cbranch_scc1 L_end_{kn}")
        write_stamps(g,0)
    g(f"s_branch L_end_{kn}")
    g(f"L_cw_{kn}:")
    cw_init(g, do_cnt=qp)
    if qp: cw_qproj(g)
    else:
        if st: g("s_waitcnt lgkmcnt(0)\ns_barrier")
        get_tag(g)
    if st:
        cw_qrecv(g)
    if 'hop1' in sections: cw_wo_dma(g)
    if st and g.cfg.get('pretouch'): cw_pretouch(g)
    if st: cw_tickets(g)
    if st or 'hop1' in sections:
        g("s_waitcnt vmcnt(0) lgkmcnt(0)\ns_barrier")
    g.stamp(4)
    if 'hop1' in sections: hop1_gather(g)
    if 'hop2' in sections: hop2(g)
    g(f"L_fin_{kn}:")
    if g.cfg.get('stamps'):
        g.stamp(7)
        if g.cfg.get('dbgst'): dbg_stamps(g)
        else: write_stamps(g,1)
    g(f"L_end_{kn}:\ns_endpgm")
    g(f""".section .rodata,"a"
.p2align 6
.amdhsa_kernel {kn}
.amdhsa_next_free_vgpr 256
.amdhsa_next_free_sgpr 102
.amdhsa_accum_offset 256
.amdhsa_group_segment_fixed_size 0
.amdhsa_kernarg_size 104
.amdhsa_user_sgpr_count 2
.amdhsa_user_sgpr_kernarg_segment_ptr 1
.amdhsa_system_sgpr_workgroup_id_x 1
.end_amdhsa_kernel""")

HEADER=open(os.path.join(os.path.dirname(os.path.abspath(__file__)),"header.txt")).read()

def build(cfg, plan, path):
    g=Gen(cfg)
    for kn,sec in plan: kernel(g,kn,sec)
    hdr=HEADER
    if len(plan)==1: hdr+=f"; @launch grid=(256,1,1) block=(320,1,1) lds={LDS_TOTAL}\n"
    else:
        for kn,sec in plan: hdr+=f"; @launch kernel={kn} grid=(256,1,1) block=(320,1,1) lds={LDS_TOTAL}\n"
    src=hdr+'.amdgcn_target "amdgcn-amd-amdhsa--gfx950"\n'+"\n".join(g.L)+"\n"
    open(path,"w").write(src)
    return src

def assemble(path_s, kernels):
    src=open(path_s).read()
    md=".amdgpu_metadata\n---\namdhsa.version: [1, 2]\namdhsa.kernels:\n"
    for k in kernels:
        md+=f"""  - .name: {k}
    .symbol: {k}.kd
    .kernarg_segment_size: 104
    .kernarg_segment_align: 8
    .group_segment_fixed_size: 0
    .private_segment_fixed_size: 0
    .wavefront_size: 64
    .sgpr_count: 102
    .vgpr_count: 256
    .max_flat_workgroup_size: 320
    .args:
      - {{.name: kernargs, .size: 104, .offset: 0, .value_kind: by_value}}
"""
    md+="...\n.end_amdgpu_metadata\n"
    open(path_s+".h.s","w").write(src+md)
    co=path_s[:-2]+".co"
    r=subprocess.run(["clang","-x","assembler","-target","amdgcn-amd-amdhsa","-mcpu=gfx950",path_s+".h.s","-o",co],capture_output=True,text=True)
    if r.returncode: print(r.stderr[:3000]); raise SystemExit(1)
    return co

if __name__=="__main__":
    cfg=dict(NS=26,B=8,predrain=2,pol="nt")
    out=sys.argv[1] if len(sys.argv)>1 else "."
    plan=[("q_kernel",["qproj"]),("s_kernel",["stream"]),("h1_kernel",["hop1"]),("h2_kernel",["hop2"])]
    build(dict(cfg),plan,f"{out}/split.s"); assemble(f"{out}/split.s",[k for k,_ in plan])
    plan=[(NAME+"_kernel",["qproj","stream","hop1","hop2"])]
    build(dict(cfg),plan,f"{out}/fused.s"); assemble(f"{out}/fused.s",[k for k,_ in plan])
    print("ok")
```

```python
import sys, os, subprocess, struct

NAME="concat_heads__gqa_block_cached__gqa_block_cached__decode"
def f2u(f): return struct.unpack("<I",struct.pack("<f",f))[0]

WS_E    = 0
WS_CNT  = 4096
WS_QG   = 0x10000
WS_PG   = 0x90000
PGS     = 4608
WS_OG   = 0x200000
WS_USED = 0x580000
WS_STAMP= 512<<20
SLOT=8192
RING=4*4*SLOT
AUX=RING
MISC=AUX+28672
L_Q   = MISC
L_TK  = MISC+1024
L_REQ = MISC+1152
L_QF  = MISC+1168
LDS_TOTAL=163840
C_SCALE = 0.09016844005555896
END_TK=0xFFF
SPIN_MAX=400000

S=dict(WG=2, WAVE=3, BR=4, TP=5, MEM=6, C=7,
 X=8, K=10, V=12, WQ=14, WO=16, OUT=18, WS=20, TAG=22, E=23,
 SRDK=24, SRDV=28, SRDA=32, SRDW=36,
 OFF=40, OFF4=41, LB=42, T0=43, T1=44, T2=45, P0=46, P1=47,
 MASK=48, WBASE=64, TKI=65, MBX=66, SPIN=67, TEAM=68, B=69, HKV=70, WL=71,
 EX=72, ACT=74, ST=76, CS=96, T5=97, T6=98, T7=99, NUNIT=100)
def s(n,k=1,o=0):
    b=S[n]+o
    return f"s{b}" if k==1 else f"s[{b}:{b+k-1}]"
V=dict(TID=0, LANE=1, D=2, KA=6, VA=10, M=18, L=19, T=20, O=36, A=44, Q=60, KB=92, VB=124, SS=156, KB2=220, X0=220, QA=116, TM=252, NM=253)
def v(n,i=0,k=1):
    b=V[n]+i
    return f"v{b}" if k==1 else f"v[{b}:{b+k-1}]"
def T(i,k=1): return v('T',i,k)
def R(b,k=1): return f"v{b}" if k==1 else f"v[{b}:{b+k-1}]"

class Gen:
    def __init__(self, cfg):
        self.cfg=cfg; self.L=[]; self.uid=0; self.q=[]
    def __call__(self,t):
        for l in t.split("\n"):
            l=l.strip()
            if l: self.L.append(("" if l.endswith(":") else "  ")+l)
    def lab(self,b="L"):
        self.uid+=1; return f"{b}_{self.kn}_{self.uid}"
    def c(self,t): self.L.append("  ; "+t)
    def vm_issue(self,tag,n): self.q.append([tag,n])
    def vm_wait(self,tag):
        idx=max(i for i,(t,n) in enumerate(self.q) if t==tag)
        n=sum(x[1] for x in self.q[idx+1:])
        assert n<=63
        self(f"s_waitcnt vmcnt({n})")
        self.q=self.q[idx+1:]
    def stamp(self,i):
        if self.cfg.get("stamps"):
            self(f"s_memrealtime s[{S['ST']+2*i}:{S['ST']+2*i+1}]")

def srd(g, name, ptr, size, off=None):
    if off is None:
        g(f"s_mov_b32 {s(name,1,0)}, {s(ptr,1,0)}\ns_mov_b32 {s(name,1,1)}, {s(ptr,1,1)}")
    else:
        g(f"s_add_u32 {s(name,1,0)}, {s(ptr,1,0)}, {off}\ns_addc_u32 {s(name,1,1)}, {s(ptr,1,1)}, 0")
    g(f"s_mov_b32 {s(name,1,2)}, {size}\ns_mov_b32 {s(name,1,3)}, 0x20000")

def prologue(g):
    g(f"s_cmp_ge_u32 s2, 256\ns_cbranch_scc1 L_end_{g.kn}")
    g.stamp(0)
    pm=g.cfg.get('perm',0)
    if pm:
        g(f"s_bfe_u32 {s('T0')}, s2, 0x50002\ns_and_b32 {s('T1')}, s2, 3\ns_and_b32 {s('T2')}, s2, 128")
        if pm in (1,3): g(f"s_add_u32 {s('T1')}, {s('T1')}, {s('T0')}\ns_and_b32 {s('T1')}, {s('T1')}, 3")
        if pm in (4,): g(f"s_lshr_b32 {s('T5')}, {s('T0')}, 1\ns_add_u32 {s('T1')}, {s('T1')}, {s('T5')}\ns_and_b32 {s('T1')}, {s('T1')}, 3")
        if pm in (2,3,4): g(f"s_lshr_b32 {s('T5')}, {s('T0')}, 1\ns_and_b32 {s('T0')}, {s('T0')}, 1\ns_lshl_b32 {s('T0')}, {s('T0')}, 4\ns_or_b32 {s('T0')}, {s('T0')}, {s('T5')}")
        if pm==5:
            g(f"s_lshr_b32 {s('T5')}, {s('T0')}, 1\ns_and_b32 {s('T0')}, {s('T0')}, 1\ns_lshr_b32 {s('T2')}, {s('T2')}, 3\ns_or_b32 {s('T5')}, {s('T5')}, {s('T2')}\ns_lshl_b32 {s('T2')}, {s('T0')}, 7\ns_mov_b32 {s('T0')}, {s('T5')}")
        g(f"s_lshl_b32 {s('T0')}, {s('T0')}, 2\ns_or_b32 {s('T0')}, {s('T0')}, {s('T1')}\ns_or_b32 s2, {s('T0')}, {s('T2')}")
    g(f"s_lshr_b32 {s('BR')}, s2, 7\ns_mul_i32 {s('T0')}, {s('BR')}, 40")
    g(f"s_add_u32 s46, s0, {s('T0')}\ns_addc_u32 s47, s1, 0")
    g("s_load_dwordx8 s[8:15], s[46:47], 0\ns_load_dwordx2 s[16:17], s[46:47], 32")
    g("s_load_dwordx2 s[18:19], s[0:1], 80\ns_load_dwordx2 s[20:21], s[0:1], 96")
    g(f"v_and_b32 {v('LANE')}, 63, v0\nv_lshrrev_b32 {T(0)}, 6, v0")
    g(f"s_lshr_b32 {s('TEAM')}, s2, 2\ns_and_b32 {s('TP')}, {s('TEAM')}, 31")
    g(f"v_readfirstlane_b32 {s('WAVE')}, {T(0)}")
    g(f"s_and_b32 {s('MEM')}, s2, 3\ns_and_b32 {s('WL')}, s2, 127")
    g(f"s_lshr_b32 {s('B')}, {s('TP')}, 3\ns_and_b32 {s('HKV')}, {s('TP')}, 7")
    g(f"s_lshl_b32 {s('C')}, {s('MEM')}, 2\ns_add_u32 {s('C')}, {s('C')}, {s('B')}")
    g(f"s_mov_b32 {s('CS')}, {f2u(C_SCALE):#x}")
    g("s_waitcnt lgkmcnt(0)")
    g(f"s_lshl_b32 {s('T0')}, {s('BR')}, 8")
    g(f"s_add_u32 s46, {s('WS')}, {s('T0')}\ns_addc_u32 s47, {s('WS',1,1)}, 0")
    g(f"s_load_dword {s('E')}, s[46:47], {WS_E}")
    srd(g,'SRDW','WS', WS_USED if (not g.cfg.get('stamps') or g.cfg.get('dbgst')) else 0x30000000)

def get_tag(g):
    g("s_waitcnt lgkmcnt(0)")
    g(f"s_mul_i32 {s('TAG')}, {s('E')}, 0x9E3779B1\ns_add_u32 {s('TAG')}, {s('TAG')}, 0x7F4A7C15")

def issue_wq_dma_v2(g):
    g.c("wq slice DMA (7 x 1KB per wave): 224 rows x 128 B")
    srd(g,'SRDA','WQ',448*8192)
    L=v('LANE')
    g(f"v_lshrrev_b32 {T(0)}, 3, {L}\nv_lshlrev_b32 {T(0)}, 13, {T(0)}")
    g(f"v_and_b32 {T(1)}, 7, {L}\nv_lshl_add_u32 {T(0)}, {T(1)}, 4, {T(0)}")
    g(f"s_lshl_b32 {s('T0')}, {s('HKV')}, 10\ns_lshr_b32 {s('T1')}, {s('C')}, 1\ns_lshl_b32 {s('T1')}, {s('T1')}, 7\ns_add_u32 {s('T0')}, {s('T0')}, {s('T1')}")
    g(f"s_and_b32 {s('T1')}, {s('C')}, 1\ns_mul_i32 {s('T1')}, {s('T1')}, {224*8192}\ns_add_u32 {s('T0')}, {s('T0')}, {s('T1')}")
    g(f"s_mul_i32 {s('T1')}, {s('WAVE')}, {56*8192}\ns_add_u32 {s('T0')}, {s('T0')}, {s('T1')}")
    g(f"s_mul_i32 {s('T1')}, {s('WAVE')}, {7*1024}\ns_add_u32 {s('T1')}, {s('T1')}, {AUX}")
    for n in range(7):
        g(f"s_mov_b32 m0, {s('T1')}\ns_add_u32 {s('T1')}, {s('T1')}, 1024")
        g(f"buffer_load_dwordx4 {T(0)}, {s('SRDA',4)}, {s('T0')} offen {g.cfg.get('wqpol','nt')} lds")
        g(f"s_add_u32 {s('T0')}, {s('T0')}, 65536")
    g.vm_issue('wq',7)

def stream_setup1(g):
    g.c("stream setup 1")
    g(f"s_lshl_b32 {s('T0')}, {s('TP')}, 22")
    srd(g,'SRDK','K',4<<20,s('T0')); srd(g,'SRDV','V',4<<20,s('T0'))
    L=v('LANE')
    g(f"v_lshrrev_b32 {T(2)}, 5, {L}\nv_and_b32 {T(3)}, 31, {L}")
    for t in range(4):
        g(f"v_add_u32 {T(4)}, {2*t}, {T(2)}\nv_lshlrev_b32 {T(4)}, 1, {T(4)}\nv_xor_b32 {T(4)}, {T(4)}, {T(3)}")
        g(f"v_lshlrev_b32 {T(4)}, 4, {T(4)}\nv_lshl_add_u32 {v('D',t)}, {T(2)}, 9, {T(4)}")
    g(f"s_lshl_b32 {s('LB')}, {s('WAVE')}, 15")
    NS=g.cfg['NS']
    if g.cfg.get('lay'):
        g(f"s_lshl_b32 {s('WBASE')}, {s('MEM')}, 7\ns_add_u32 {s('WBASE')}, {s('WBASE')}, {s('WAVE')}\ns_lshl_b32 {s('WBASE')}, {s('WBASE')}, 13")
    else:
        g(f"s_mul_i32 {s('WBASE')}, {s('MEM')}, {NS*4}\ns_add_u32 {s('WBASE')}, {s('WBASE')}, {s('WAVE')}\ns_lshl_b32 {s('WBASE')}, {s('WBASE')}, 13")
    if g.cfg.get('rot'):
        g(f"s_mul_i32 {s('T7')}, s2, {g.cfg['rot']}\ns_and_b32 {s('T7')}, {s('T7')}, 0xfff")
        g(f"s_mul_i32 {s('T2')}, {s('T7')}, {(65536+NS-1)//NS}\ns_lshr_b32 {s('T2')}, {s('T2')}, 16\ns_mul_i32 {s('T2')}, {s('T2')}, {NS}\ns_sub_i32 {s('T7')}, {s('T7')}, {s('T2')}")
        g(f"s_cmp_lt_i32 {s('T7')}, 0\ns_cselect_b32 {s('T2')}, {NS}, 0\ns_add_u32 {s('T7')}, {s('T7')}, {s('T2')}\ns_lshl_b32 {s('T7')}, {s('T7')}, 15")

def stream_setup2(g):
    g.c("stream setup 2")
    L=v('LANE')
    g(f"v_and_b32 {T(0)}, 15, {L}\nv_lshrrev_b32 {T(1)}, 4, {L}")
    g(f"v_and_b32 {T(2)}, 1, {T(0)}\nv_lshlrev_b32 {T(2)}, 1, {T(2)}\nv_xor_b32 {T(2)}, {T(2)}, {T(1)}\nv_lshlrev_b32 {T(2)}, 4, {T(2)}")
    g(f"v_bfe_u32 {T(3)}, {T(0)}, 1, 2\nv_lshlrev_b32 {T(3)}, 6, {T(3)}")
    g(f"v_lshl_add_u32 {T(2)}, {T(0)}, 9, {T(2)}\nv_add_u32 {T(2)}, {T(2)}, {T(3)}")
    for sg in range(4):
        g(f"v_xor_b32 {v('KA',sg)}, {sg*64}, {T(2)}\nv_add_u32 {v('KA',sg)}, {s('LB')}, {v('KA',sg)}")
    g(f"v_lshrrev_b32 {T(2)}, 2, {T(0)}\nv_and_b32 {T(3)}, 3, {T(0)}\nv_lshl_add_u32 {T(2)}, {T(1)}, 2, {T(2)}")
    g(f"v_and_b32 {T(4)}, 7, {T(2)}\nv_lshlrev_b32 {T(4)}, 5, {T(4)}\nv_lshl_add_u32 {T(4)}, {T(2)}, 9, {T(4)}\nv_lshl_add_u32 {T(4)}, {T(3)}, 3, {T(4)}")
    for d in range(8):
        g(f"v_xor_b32 {v('VA',d)}, {d*32}, {T(4)}\nv_add_u32 {v('VA',d)}, {s('LB')}, {v('VA',d)}")
    for t8 in range(8):
        m=(3<<(2*t8))*0x00010001
        g(f"s_mov_b32 {s('MASK',1,2*t8)}, {m:#x}\ns_mov_b32 {s('MASK',1,2*t8+1)}, {m:#x}")
    g(f"v_mov_b32 {v('M')}, {f2u(-1e30):#x}\nv_mov_b32 {v('L')}, 0")
    for i in range(8): g(f"v_mov_b32 {v('O',i)}, 0")

def dma_list(slot, kv, pol):
    sr=s('SRDK',4) if kv==0 else s('SRDV',4)
    out=[]
    for t in range(8):
        pre=""
        if t%4==0: pre=f"s_add_u32 m0, {s('LB')}, {slot*SLOT+(t//4)*4096}\ns_nop 0\n"
        out.append(pre+f"buffer_load_dwordx4 {v('D',t%4)}, {sr}, {s('OFF') if t<4 else s('OFF4')} offen offset:{(t%4)*1024} {pol} lds")
    return out
def set_off_static(g, unit):
    if g.cfg.get('rot'):
        NS=g.cfg['NS']
        g(f"s_add_u32 {s('OFF')}, {s('T7')}, {unit*4*8192}\ns_sub_u32 {s('OFF4')}, {s('OFF')}, {NS*32768}\ns_cmp_ge_u32 {s('OFF')}, {NS*32768}\ns_cselect_b32 {s('OFF')}, {s('OFF4')}, {s('OFF')}")
        g(f"s_add_u32 {s('OFF')}, {s('OFF')}, {s('WBASE')}\ns_add_u32 {s('OFF4')}, {s('OFF')}, 4096")
        return
    g(f"s_add_u32 {s('OFF')}, {s('WBASE')}, {unit*4*8192}\ns_add_u32 {s('OFF4')}, {s('OFF')}, 4096")
def read_k(g, slot, dst):
    for st in range(8):
        g(f"ds_read_b128 {v(dst,4*st,4)}, {v('KA',st&3)} offset:{slot*SLOT+(st>>2)*256}")
def qk_list(src, sidx):
    return [f"v_mfma_f32_16x16x32_bf16 {v('SS',4*sidx,4)}, {v(src,4*st,4)}, {v('Q',4*st,4)}, {'0' if st==0 else v('SS',4*sidx,4)}" for st in range(8)]
def interleave(g,a,b):
    for i in range(max(len(a),len(b))):
        if i<len(a): g(a[i])
        if i<len(b): g(b[i])
def xlane(g, reg, op, t0, t1):
    for sw in ("v_permlane16_swap_b32","v_permlane32_swap_b32"):
        g(f"v_mov_b32 {t0}, {reg}\nv_mov_b32 {t1}, {reg}\ns_nop 1\n{sw} {t0}, {t1}\ns_nop 1\n{op} {reg}, {t0}, {t1}")
def sm_round(g, t, first):
    r=[v('SS',4*t+i) for i in range(4)]
    for i in (0,2):
        tt=T(6+i//2)
        g(f"v_cvt_pk_bf16_f32 {tt}, {r[i]}, {r[i+1]}\nv_lshlrev_b32 {r[i]}, 16, {tt}\nv_and_b32 {r[i+1]}, 0xffff0000, {tt}")
    if first: g(f"v_max3_f32 {v('TM')}, {r[0]}, {r[1]}, {r[2]}\nv_max_f32 {v('TM')}, {v('TM')}, {r[3]}")
    else: g(f"v_max3_f32 {v('TM')}, {v('TM')}, {r[0]}, {r[1]}\nv_max3_f32 {v('TM')}, {v('TM')}, {r[2]}, {r[3]}")
def sm_stats(g):
    xlane(g,v('TM'),"v_max_f32",T(1),T(2))
    g(f"v_mul_f32 {T(0)}, {s('CS')}, {v('TM')}\nv_max_f32 {T(0)}, {T(0)}, {v('M')}")
    g(f"v_sub_f32 {T(1)}, {v('M')}, {T(0)}\nv_exp_f32 {T(1)}, {T(1)}\nv_mov_b32 {v('M')}, {T(0)}")
    g(f"v_mul_f32 {v('L')}, {v('L')}, {T(1)}")
    for i in range(8): g(f"v_mul_f32 {v('O',i)}, {v('O',i)}, {T(1)}")
def sm_p(g, t):
    r=[v('SS',4*t+i) for i in range(4)]
    for x in r: g(f"v_fma_f32 {x}, {x}, {s('CS')}, -{v('M')}")
    for x in r: g(f"v_exp_f32 {x}, {x}")
    g(f"s_nop 0\nv_add_f32 {T(4)}, {r[0]}, {r[1]}\nv_add_f32 {T(5)}, {r[2]}, {r[3]}\nv_cvt_pk_bf16_f32 {r[0]}, {r[0]}, {r[1]}\nv_cvt_pk_bf16_f32 {r[1]}, {r[2]}, {r[3]}")
    g(f"v_add_f32 {T(4)}, {T(4)}, {T(5)}\nv_add_f32 {v('L')}, {v('L')}, {T(4)}")
def read_v(g, slot):
    for db in range(16):
        g(f"ds_read_b64_tr_b16 {v('VB',2*db,2)}, {v('VA',db&7)} offset:{slot*SLOT+(db>>3)*256}")
def mask_p(g, sidx):
    for t8 in range(8):
        for r in range(2):
            g(f"v_cndmask_b32 {v('A',2*t8+r)}, 0, {v('SS',4*sidx+r)}, {s('MASK',2,2*t8)}")
def pv_list():
    return [f"v_mfma_f32_16x16x16_bf16 {v('O',4*h,4)}, {v('VB',2*(8*h+t8),2)}, {v('A',2*t8,2)}, {v('O',4*h,4)}" for t8 in range(8) for h in range(2)]

def stream_waves(g, fused_q):
    cfg=g.cfg; NS=cfg['NS']; B=cfg['B']; pol=cfg.get('pol','nt'); Dm=cfg.get('D',1); D=cfg.get('Dh',Dm)
    cur=[D]
    NSB=NS-2
    assert NSB%B==0
    g.q=[]
    kfirst=cfg.get('kfirst',0)
    if fused_q and not kfirst: issue_wq_dma(g)
    stream_setup1(g)
    seq=[]
    for b in range(NSB//B):
        for kv in (0,1):
            for i in range(B): seq.append((kv,b*B+i,i,B))
    for n in (NSB,NSB+1):
        for kv in (0,1): seq.append((kv,n,0,1))
    def pace():
        n=8*(cur[0]-1)
        g(f"s_waitcnt vmcnt({n})")
        keep=[]; acc=0
        for x in reversed(g.q):
            if acc>=n: break
            keep.append(x); acc+=x[1]
        g.q=list(reversed(keep))
    def landed(tag): return all(t!=tag for t,_ in g.q)
    def issue(i, paced=True):
        if paced: pace()
        set_off_static(g,seq[i][1]); g.vm_issue(('t',i),8)
        return dma_list(i%4,seq[i][0],pol)
    for i in range(D):
        for x in issue(i,False): g(x)
    if fused_q and kfirst: issue_wq_dma(g)
    stream_setup2(g)
    if fused_q: g.vm_wait('wq')
    g("s_barrier")
    for i in range(D,4):
        for x in issue(i): g(x)
    get_tag(g)
    PD=min(cfg.get('predrain',2),B)
    bufs=['KB','KB2']
    for i in range(PD):
        if not landed(('t',i)): g.vm_wait(('t',i))
        read_k(g,i%4,bufs[i]); g("s_waitcnt lgkmcnt(0)")
        for x in issue(i+4): g(x)
    g.c("wait for q in LDS")
    lp=g.lab("Lq")
    g(f"v_mov_b32 {T(0)}, {L_QF}\ns_mov_b32 {s('SPIN')}, 0")
    g(f"{lp}:\nds_read_b32 {T(1)}, {T(0)}\ns_waitcnt lgkmcnt(0)\nv_readfirstlane_b32 {s('T0')}, {T(1)}")
    g(f"s_add_u32 {s('SPIN')}, {s('SPIN')}, 1\ns_cmp_gt_u32 {s('SPIN')}, {SPIN_MAX*8}\ns_cbranch_scc1 {lp}_x")
    g(f"s_cmp_eq_u32 {s('T0')}, 0\ns_cbranch_scc0 {lp}_x\ns_sleep 1\ns_branch {lp}\n{lp}_x:")
    g.stamp(1)
    cur[0]=Dm
    L=v('LANE')
    g(f"v_and_b32 {T(0)}, 1, {L}\nv_lshlrev_b32 {T(0)}, 9, {T(0)}\nv_lshrrev_b32 {T(1)}, 4, {L}\nv_lshl_add_u32 {T(0)}, {T(1)}, 4, {T(0)}\nv_add_u32 {T(0)}, {L_Q}, {T(0)}")
    for st in range(8): g(f"ds_read_b128 {v('Q',4*st,4)}, {T(0)} offset:{st*64}")
    g("s_waitcnt lgkmcnt(0)")
    for i in range(PD):
        for x in qk_list(bufs[i],i): g(x)
    assert PD<B
    g("s_nop 7")
    for i in range(PD-1): sm_round(g,i,i==0)
    PD_done=[PD-1]
    def do_tile(kv, slot, ib, bb, dlist, pacefn):
        if kv==0:
            read_k(g,slot,'KB')
            if ib>0 and ib>PD_done[0]: sm_round(g,ib-1,ib-1==0)
            g("s_waitcnt lgkmcnt(0)")
            if dlist: pacefn()
            for x in dlist: g(x)
            for x in qk_list('KB',ib): g(x)
            if ib==bb-1:
                g("s_nop 7")
                sm_round(g,ib,ib==0); sm_stats(g)
        else:
            read_v(g,slot); sm_p(g,ib); mask_p(g,ib); g("s_waitcnt lgkmcnt(0)")
            if dlist: pacefn()
            for x in dlist: g(x)
            for x in pv_list(): g(x)
    for i in range(PD,len(seq)-4):
        kv,u,ib,bb=seq[i]
        if not landed(('t',i)): g.vm_wait(('t',i))
        set_off_static(g,seq[i+4][1])
        def pf(i=i):
            pace(); g.vm_issue(('t',i+4),8)
        do_tile(kv,i%4,ib,bb,dma_list(i%4,seq[i+4][0],pol),pf)
        if kv==1: PD_done[0]=-1
    g.stamp(2)
    g.c("pool loop")
    g(f"s_mov_b32 {s('TKI')}, 0\ns_lshl_b32 {s('MBX')}, {s('WAVE')}, 5\ns_add_u32 {s('MBX')}, {s('MBX')}, {L_TK}")
    g(f"s_mov_b32 {s('NUNIT')}, {NS}")
    kn=g.kn
    DP=cfg.get('DP',Dm)
    pw=lambda: g(f"s_waitcnt vmcnt({8*(DP-1)})")
    g(f"L_pool0_{kn}:")
    for par in (0,1):
        lp=g.lab("Ltk")
        g(f"s_and_b32 {s('T0')}, {s('TKI')}, 7\ns_lshl_b32 {s('T0')}, {s('T0')}, 2\ns_add_u32 {s('T0')}, {s('T0')}, {s('MBX')}\nv_mov_b32 {T(6)}, {s('T0')}")
        g(f"s_add_u32 {s('TKI')}, {s('TKI')}, 1\ns_mov_b32 {s('SPIN')}, 0")
        g(f"{lp}:\nds_read_b32 {T(7)}, {T(6)}\ns_waitcnt lgkmcnt(0)\nv_readfirstlane_b32 {s('T0')}, {T(7)}")
        g(f"s_add_u32 {s('SPIN')}, {s('SPIN')}, 1\ns_cmp_gt_u32 {s('SPIN')}, {SPIN_MAX*8}\ns_cbranch_scc1 L_tail{par}_{kn}")
        g(f"s_lshr_b32 {s('T1')}, {s('T0')}, 12\ns_cmp_eq_u32 {s('T1')}, {s('TKI')}\ns_cbranch_scc0 {lp}")
        def req():
            g(f"s_lshl_b32 {s('T1')}, {s('WAVE')}, 2\ns_add_u32 {s('T1')}, {s('T1')}, {L_REQ}\nv_mov_b32 {T(6)}, {s('T1')}\nv_mov_b32 {T(7)}, {s('TKI')}\nds_write_b32 {T(6)}, {T(7)}")
        if not cfg.get('lateq'): req()
        g(f"s_and_b32 {s('T0')}, {s('T0')}, 0xfff\ns_cmp_eq_u32 {s('T0')}, {END_TK}\ns_cbranch_scc1 L_tail{par}_{kn}")
        lay=cfg.get('lay')
        PP=(32-NS)*4
        if lay==1:
            g(f"s_mul_i32 {s('T1')}, {s('T0')}, {(65536+PP-1)//PP}\ns_lshr_b32 {s('T1')}, {s('T1')}, 16\ns_mul_i32 {s('T2')}, {s('T1')}, {PP}\ns_sub_u32 {s('T0')}, {s('T0')}, {s('T2')}")
            g(f"s_lshl_b32 {s('T1')}, {s('T1')}, 7\ns_add_u32 {s('T0')}, {s('T0')}, {s('T1')}\ns_add_u32 {s('T0')}, {s('T0')}, {NS*4}\ns_lshl_b32 {s('OFF')}, {s('T0')}, 13\ns_add_u32 {s('OFF4')}, {s('OFF')}, 4096")
        elif lay==2:
            g(f"s_and_b32 {s('T1')}, {s('T0')}, 3\ns_lshr_b32 {s('T0')}, {s('T0')}, 2")
            g(f"s_lshl_b32 {s('T1')}, {s('T1')}, 7\ns_add_u32 {s('T0')}, {s('T0')}, {s('T1')}\ns_add_u32 {s('T0')}, {s('T0')}, {NS*4}\ns_lshl_b32 {s('OFF')}, {s('T0')}, 13\ns_add_u32 {s('OFF4')}, {s('OFF')}, 4096")
        else:
            g(f"s_add_u32 {s('T0')}, {s('T0')}, {NS*16}\ns_lshl_b32 {s('OFF')}, {s('T0')}, 13\ns_add_u32 {s('OFF4')}, {s('OFF')}, 4096")
        g(f"s_add_u32 {s('NUNIT')}, {s('NUNIT')}, 1")
        g("s_waitcnt vmcnt(24)")
        do_tile(0,2*par,0,1,dma_list(2*par,0,pol),pw)
        if cfg.get('lateq'): req()
        g("s_waitcnt vmcnt(24)")
        do_tile(1,2*par+1,0,1,dma_list(2*par+1,1,pol),pw)
    g(f"s_branch L_pool0_{kn}")
    for par in (0,1):
        g(f"L_tail{par}_{kn}:")
        g("s_waitcnt vmcnt(24)"); do_tile(0,2*par,0,1,[],None)
        g("s_waitcnt vmcnt(16)"); do_tile(1,2*par+1,0,1,[],None)
        g("s_waitcnt vmcnt(8)");  do_tile(0,2*(1-par),0,1,[],None)
        g("s_waitcnt vmcnt(0)");  do_tile(1,2*(1-par)+1,0,1,[],None)
        if par==0: g(f"s_branch L_sdone_{kn}")
    g(f"L_sdone_{kn}:")
    g.stamp(3)
    g.c("wave partial -> LDS")
    xlane(g,v('L'),"v_add_f32",T(1),T(2))
    L=v('LANE')
    g(f"v_lshlrev_b32 {T(0)}, 4, {L}\nv_add_u32 {T(0)}, {s('LB')}, {T(0)}")
    g(f"v_and_b32 {T(1)}, 1, {L}\nv_lshlrev_b32 {T(1)}, 3, {T(1)}\nv_add_u32 {T(1)}, {s('LB')}, {T(1)}")
    g(f"v_mov_b32 {T(2)}, {v('M')}\nv_mov_b32 {T(3)}, {v('L')}")
    g("s_nop 4")
    g(f"ds_write_b128 {T(0)}, {v('O',0,4)}\nds_write_b128 {T(0)}, {v('O',4,4)} offset:1024\nds_write_b64 {T(1)}, {T(2,2)} offset:2048")
    g("s_waitcnt lgkmcnt(0)\ns_barrier")
    X=V['X0']; KB=V['KB']
    g(f"s_and_b32 {s('T0')}, {s('WAVE')}, 1\ns_lshl_b32 {s('T0')}, {s('T0')}, 10\ns_lshr_b32 {s('T1')}, {s('WAVE')}, 1")
    g(f"v_bfe_u32 {T(0)}, {L}, 1, 2\nv_lshlrev_b32 {T(0)}, 8, {T(0)}\nv_lshrrev_b32 {T(1)}, 3, {L}\nv_lshl_add_u32 {T(0)}, {T(1)}, 5, {T(0)}")
    g(f"v_and_b32 {T(1)}, 1, {L}\nv_lshl_add_u32 {T(0)}, {T(1)}, 3, {T(0)}")
    g(f"s_lshl_b32 {s('T2')}, {s('T1')}, 4\ns_add_u32 {s('T2')}, {s('T2')}, {s('T0')}\nv_add_u32 {T(0)}, {s('T2')}, {T(0)}\nv_add_u32 {T(2)}, 65536, {T(0)}")
    g(f"s_lshl_b32 {s('T2')}, {s('T1')}, 3\nv_mov_b32 {T(1)}, {s('T2')}\nv_add_u32 {T(3)}, 65536, {T(1)}")
    for w in range(4):
        g(f"ds_read_b64 {R(KB+2*w,2)}, {T(0) if w<2 else T(2)} offset:{(w&1)*32768}")
        g(f"ds_read_b64 {R(KB+8+2*w,2)}, {T(1) if w<2 else T(3)} offset:{(w&1)*32768+2048}")
    g(f"v_lshlrev_b32 {T(4)}, 4, {L}")
    g(f"s_mul_i32 {s('T5')}, s2, {PGS}\ns_add_u32 {s('T5')}, {s('T5')}, {WS_PG}\ns_lshl_b32 {s('T1')}, {s('T1')}, 11\ns_add_u32 {s('T1')}, {s('T1')}, {s('T0')}\ns_add_u32 {s('T1')}, {s('T1')}, {s('T5')}")
    g("s_waitcnt lgkmcnt(0)")
    m=[R(KB+8+2*w) for w in range(4)]; l=[R(KB+9+2*w) for w in range(4)]
    mx=R(X); lt=R(X+2)
    g(f"v_max3_f32 {mx}, {m[0]}, {m[1]}, {m[2]}\nv_max_f32 {mx}, {mx}, {m[3]}")
    for w in range(4): g(f"v_sub_f32 {m[w]}, {m[w]}, {mx}")
    for w in range(4): g(f"v_exp_f32 {m[w]}, {m[w]}")
    g(f"v_mov_b32 {R(X+5)}, {s('TAG')}\nv_mov_b32 {R(X+7)}, {s('TAG')}")
    for r in range(2):
        o=R(X+4+2*r)
        g(f"v_mul_f32 {o}, {m[0]}, {R(KB+r)}")
        for w in range(1,4): g(f"v_fma_f32 {o}, {m[w]}, {R(KB+2*w+r)}, {o}")
    g(f"buffer_store_dwordx4 {R(X+4,4)}, {T(4)}, {s('SRDW',4)}, {s('T1')} offen {g.cfg.get('stf','sc1')}")
    l2=g.lab("Lnost")
    g(f"s_and_b32 {s('T0')}, {s('WAVE')}, 1\ns_cmp_lg_u32 {s('T0')}, 0\ns_cbranch_scc1 {l2}")
    g(f"v_mul_f32 {lt}, {m[0]}, {l[0]}")
    for w in range(1,4): g(f"v_fma_f32 {lt}, {m[w]}, {l[w]}, {lt}")
    g(f"v_mov_b32 {R(X+1)}, {s('TAG')}\nv_mov_b32 {R(X+3)}, {s('TAG')}\nv_mov_b32 {T(3)}, 0")
    g(f"s_lshl_b32 {s('T0')}, {s('WAVE')}, 3\ns_add_u32 {s('T5')}, {s('T5')}, {s('T0')}\ns_add_u32 {s('T5')}, {s('T5')}, 4096\ns_mov_b64 {s('EX',2)}, exec\ns_mov_b64 exec, 1")
    g(f"buffer_store_dwordx4 {R(X,4)}, {T(3)}, {s('SRDW',4)}, {s('T5')} offen {g.cfg.get('stf','sc1')}")
    g(f"s_mov_b64 exec, {s('EX',2)}")
    g(f"{l2}:")
    g.stamp(6)

def hop1_gather(g):
    g.c("hop1 gather")
    L=v('LANE'); X=V['X0']; KB=V['KB']; VB=V['VB']
    g(f"v_lshrrev_b32 {T(0)}, 4, {L}\nv_and_b32 {T(1)}, 15, {L}")
    g(f"v_and_b32 {T(3)}, 3, {T(1)}\nv_lshrrev_b32 {T(4)}, 2, {T(1)}")
    g(f"v_lshlrev_b32 {T(3)}, 5, {T(3)}\nv_add_u32 {T(3)}, {T(3)}, {T(4)}\nv_mul_u32_u24 {T(3)}, {PGS}, {T(3)}")
    g(f"v_mov_b32 {T(5)}, {T(3)}\nv_lshl_add_u32 {T(3)}, {T(0)}, 6, {T(3)}")
    g(f"s_lshl_b32 {s('T0')}, {s('BR')}, 5\ns_add_u32 {s('T0')}, {s('T0')}, {s('HKV')}\ns_mul_i32 {s('T0')}, {s('T0')}, {4*PGS}\ns_add_u32 {s('T0')}, {s('T0')}, {WS_PG}")
    g(f"s_lshl_b32 {s('T1')}, {s('C')}, 8\ns_add_u32 {s('T1')}, {s('T1')}, {s('T0')}")
    g(f"s_lshr_b32 {s('T2')}, {s('C')}, 3\ns_lshl_b32 {s('T2')}, {s('T2')}, 4\ns_add_u32 {s('T2')}, {s('T2')}, {s('T0')}\ns_add_u32 {s('T2')}, {s('T2')}, 4096")
    lp=g.lab("Lh1")
    if g.cfg.get('h1delay'): g(f"s_sleep {g.cfg['h1delay']}")
    g(f"s_mov_b32 {s('SPIN')}, 0")
    g(f"{lp}:")
    for n in range(4):
        g(f"buffer_load_dwordx4 {R(KB+4*n,4)}, {T(3)}, {s('SRDW',4)}, {s('T1')} offen offset:{16*n} {g.cfg.get('ldf','sc1')}")
    g(f"buffer_load_dwordx4 {R(KB+16,4)}, {T(5)}, {s('SRDW',4)}, {s('T2')} offen {g.cfg.get('ldf','sc1')}")
    g("s_waitcnt vmcnt(0)")
    g(f"v_xor_b32 {T(6)}, {s('TAG')}, {R(KB+1)}")
    for n in range(1,10):
        g(f"v_xor_b32 {T(7)}, {s('TAG')}, {R(KB+1+2*n)}\nv_or_b32 {T(6)}, {T(6)}, {T(7)}")
    g(f"v_cmp_ne_u32 vcc, 0, {T(6)}\ns_add_u32 {s('SPIN')}, {s('SPIN')}, 1\ns_cmp_gt_u32 {s('SPIN')}, {SPIN_MAX}\ns_cbranch_scc1 {lp}_x")
    g(f"s_cbranch_vccz {lp}_x\ns_sleep {g.cfg.get('h1sleep',2)}\ns_branch {lp}\n{lp}_x:")
    g.stamp(5)
    if g.cfg.get('stamps'): g(f"s_waitcnt lgkmcnt(0)\ns_mov_b32 s{S['ST']+16}, {s('SPIN')}\ns_mov_b32 s{S['ST']+17}, 0")
    M=R(KB+16); Lr=R(KB+18)
    def ror_red(reg,op,t):
        for n in (8,4):
            g(f"s_nop 1\nv_mov_b32_dpp {t}, {reg} row_ror:{n} row_mask:0xf bank_mask:0xf\n{op} {reg}, {reg}, {t}")
    g(f"v_mov_b32 {T(6)}, {M}")
    ror_red(T(6),"v_max_f32",T(7))
    g(f"v_sub_f32 {T(6)}, {M}, {T(6)}\nv_exp_f32 {T(6)}, {T(6)}\ns_nop 0\nv_mul_f32 {T(8)}, {T(6)}, {Lr}")
    ror_red(T(8),"v_add_f32",T(7))
    g(f"v_rcp_f32 {T(8)}, {T(8)}\ns_nop 0\nv_mul_f32 {T(6)}, {T(6)}, {T(8)}")
    for e in range(8): g(f"v_mul_f32 {R(KB+2*e)}, {R(KB+2*e)}, {T(6)}")
    for n in (8,4):
        g("s_nop 1")
        for e in range(8): g(f"v_mov_b32_dpp {R(VB+e)}, {R(KB+2*e)} row_ror:{n} row_mask:0xf bank_mask:0xf")
        for e in range(8): g(f"v_add_f32 {R(KB+2*e)}, {R(KB+2*e)}, {R(VB+e)}")
    for e in range(4): g(f"v_cvt_pk_bf16_f32 {R(X+e)}, {R(KB+4*e)}, {R(KB+4*e+2)}")
    g(f"v_lshlrev_b32 {T(0)}, 4, {L}\nv_add_u32 {T(0)}, {L_Q}, {T(0)}\nds_write_b128 {T(0)}, {R(X,4)}")
    g("s_waitcnt lgkmcnt(0)\ns_barrier")

def hop1_proj(g):
    g.c("hop1 projection")
    L=v('LANE'); X=V['X0']; Q=V['Q']; SS=V['SS']; A0=V['A']
    g(f"v_lshrrev_b32 {T(0)}, 4, {L}\nv_and_b32 {T(1)}, 15, {L}\nv_lshrrev_b32 {T(2)}, 2, {T(1)}\nv_and_b32 {T(3)}, 3, {T(1)}")
    g(f"v_lshl_add_u32 {T(2)}, {T(0)}, 3, {T(2)}\nv_mul_u32_u24 {T(2)}, 896, {T(2)}\nv_lshl_add_u32 {T(2)}, {T(3)}, 3, {T(2)}")
    g(f"s_mul_i32 {s('T0')}, {s('WAVE')}, {7*32}\ns_add_u32 {s('T0')}, {s('T0')}, {AUX}\nv_add_u32 {T(2)}, {s('T0')}, {T(2)}")
    for n in range(7):
        g(f"ds_read_b64_tr_b16 {R(Q+4*n,2)}, {T(2)} offset:{n*32}")
        g(f"ds_read_b64_tr_b16 {R(Q+4*n+2,2)}, {T(2)} offset:{n*32+4*896}")
    g(f"s_mul_i32 {s('T0')}, {s('BR')}, 28\ns_mul_i32 {s('T1')}, {s('WAVE')}, 7\ns_add_u32 {s('T0')}, {s('T0')}, {s('T1')}\ns_lshl_b32 {s('T0')}, {s('T0')}, 7")
    g(f"s_lshl_b32 {s('T1')}, {s('HKV')}, 4\ns_add_u32 {s('T1')}, {s('T1')}, {s('C')}\ns_add_u32 {s('T0')}, {s('T0')}, {s('T1')}\ns_lshl_b32 {s('T0')}, {s('T0')}, 9\ns_add_u32 {s('T0')}, {s('T0')}, {WS_OG}")
    g(f"v_lshrrev_b32 {T(4)}, 3, {T(1)}\nv_lshlrev_b32 {T(4)}, 16, {T(4)}\nv_lshl_add_u32 {T(4)}, {T(3)}, 7, {T(4)}\nv_lshl_add_u32 {T(4)}, {T(0)}, 5, {T(4)}")
    g(f"v_bfe_u32 {T(5)}, {T(1)}, 2, 1\nv_lshl_add_u32 {T(4)}, {T(5)}, 4, {T(4)}")
    for i in range(8): g(f"v_mov_b32 {R(A0+2*i+1)}, {s('TAG')}")
    g(f"s_mov_b32 {s('MASK',1,0)}, 0xf0f0f0f0\ns_mov_b32 {s('MASK',1,1)}, 0xf0f0f0f0\ns_mov_b32 {s('MASK',1,2)}, 0xff00ff00\ns_mov_b32 {s('MASK',1,3)}, 0xff00ff00")
    g(f"v_lshlrev_b32 {T(0)}, 4, {L}\nv_add_u32 {T(0)}, {L_Q}, {T(0)}")
    g("s_waitcnt lgkmcnt(0)\ns_barrier")
    g.stamp(4)
    g(f"ds_read_b128 {R(X,4)}, {T(0)}\ns_waitcnt lgkmcnt(0)")
    for n in range(7):
        g(f"v_mfma_f32_16x16x32_bf16 {R(SS+4*n,4)}, {R(Q+4*n,4)}, {R(X,4)}, 0")
    g("s_nop 1")
    mh=s('MASK',2,0); mc=s('MASK',2,2)
    for pr in range(4):
        n0=2*pr; n1=2*pr+1
        base=A0+4*pr
        if n1<7:
            for e in range(2):
                g(f"v_cndmask_b32 {T(6)}, {R(SS+4*n0+e)}, {R(SS+4*n0+2+e)}, {mh}\nv_cndmask_b32 {T(7)}, {R(SS+4*n1+e)}, {R(SS+4*n1+2+e)}, {mh}\nv_cndmask_b32 {R(base+2*e)}, {T(6)}, {T(7)}, {mc}")
        else:
            g("s_nop 4")
            for e in range(2):
                g(f"v_cndmask_b32 {R(base+2*e)}, {R(SS+4*n0+e)}, {R(SS+4*n0+2+e)}, {mh}")
            g(f"s_mov_b64 {s('EX',2)}, exec\ns_mov_b32 exec_lo, 0x00ff00ff\ns_mov_b32 exec_hi, 0x00ff00ff")
        g(f"buffer_store_dwordx4 {R(base,4)}, {T(4)}, {s('SRDW',4)}, {s('T0')} offen {g.cfg.get('stf','sc1')}")
        g(f"s_add_u32 {s('T0')}, {s('T0')}, 131072")
    g(f"s_mov_b64 exec, {s('EX',2)}")
    g.stamp(5)

def cw_init(g, do_cnt):
    g.c("CW init")
    L=v('LANE')
    g(f"v_lshlrev_b32 {T(0)}, 2, {L}\nv_add_u32 {T(0)}, {L_TK}, {T(0)}\nv_mov_b32 {T(1)}, 0\nds_write_b32 {T(0)}, {T(1)}")
    if do_cnt:
        l=g.lab("Lnc")
        g(f"s_cmp_lg_u32 {s('MEM')}, 0\ns_cbranch_scc1 {l}")
        g(f"s_lshl_b32 {s('T0')}, {s('TEAM')}, 8\ns_add_u32 {s('T0')}, {s('T0')}, {WS_CNT}\nv_mov_b32 {T(2)}, 0")
        g(f"s_mov_b64 {s('EX',2)}, exec\ns_mov_b64 exec, 1")
        g(f"buffer_store_dword {T(1)}, {T(2)}, {s('SRDW',4)}, {s('T0')} offen sc1")
        g(f"s_mov_b64 exec, {s('EX',2)}\n{l}:")

def cw_qproj_v2(g):
    L=v('LANE'); XR=V['Q']
    g.c("x operand loads")
    srd(g,'SRDA','X',4*896)
    g(f"v_and_b32 {T(0)}, 3, {L}\nv_mul_u32_u24 {T(0)}, 896, {T(0)}\nv_lshrrev_b32 {T(1)}, 4, {L}\nv_lshl_add_u32 {T(0)}, {T(1)}, 4, {T(0)}")
    g(f"s_and_b32 {s('T0')}, {s('C')}, 1\ns_mul_i32 {s('T0')}, {s('T0')}, 448")
    for st in range(7):
        g(f"buffer_load_dwordx4 {R(XR+4*st,4)}, {T(0)}, {s('SRDA',4)}, {s('T0')} offen offset:{st*64} {g.cfg.get('xpol','nt')}")
    g("s_waitcnt lgkmcnt(0)\ns_barrier")
    g.stamp(1)
    g(f"v_and_b32 {T(2)}, 15, {L}\nv_lshrrev_b32 {T(3)}, 2, {T(2)}\nv_and_b32 {T(4)}, 3, {T(2)}")
    g(f"v_lshl_add_u32 {T(3)}, {T(1)}, 3, {T(3)}\nv_lshlrev_b32 {T(3)}, 7, {T(3)}\nv_lshl_add_u32 {T(3)}, {T(4)}, 3, {T(3)}\nv_add_u32 {T(3)}, {AUX}, {T(3)}")
    AB=V['KB']
    D=V['O']
    for cb in range(4):
        for st in range(7):
            g(f"ds_read_b64_tr_b16 {R(AB+28*cb+4*st,2)}, {T(3)} offset:{st*4096+cb*32}")
            g(f"ds_read_b64_tr_b16 {R(AB+28*cb+4*st+2,2)}, {T(3)} offset:{st*4096+cb*32+512}")
    g(f"v_lshlrev_b32 {T(5)}, 16, {T(4)}\nv_lshrrev_b32 {T(6)}, 3, {T(2)}\nv_lshl_add_u32 {T(5)}, {T(6)}, 7, {T(5)}\nv_lshl_add_u32 {T(5)}, {T(1)}, 5, {T(5)}\nv_bfe_u32 {T(6)}, {T(2)}, 2, 1\nv_lshl_add_u32 {T(5)}, {T(6)}, 4, {T(5)}")
    g(f"s_lshl_b32 {s('T0')}, {s('BR')}, 5\ns_add_u32 {s('T0')}, {s('T0')}, {s('HKV')}\ns_lshl_b32 {s('T0')}, {s('T0')}, 13\ns_add_u32 {s('T0')}, {s('T0')}, {WS_QG}")
    g(f"s_and_b32 {s('T1')}, {s('C')}, 1\ns_lshl_b32 {s('T1')}, {s('T1')}, 12\ns_add_u32 {s('T0')}, {s('T0')}, {s('T1')}\ns_lshr_b32 {s('T1')}, {s('C')}, 1\ns_lshl_b32 {s('T1')}, {s('T1')}, 9\ns_add_u32 {s('T0')}, {s('T0')}, {s('T1')}")
    g(f"s_mov_b32 {s('MASK',1,0)}, 0xf0f0f0f0\ns_mov_b32 {s('MASK',1,1)}, 0xf0f0f0f0\ns_mov_b32 {s('MASK',1,2)}, 0xff00ff00\ns_mov_b32 {s('MASK',1,3)}, 0xff00ff00")
    get_tag(g)
    g(f"v_mov_b32 {T(9)}, {s('TAG')}\nv_mov_b32 {T(11)}, {s('TAG')}\nv_mov_b32 {T(13)}, {s('TAG')}\nv_mov_b32 {T(15)}, {s('TAG')}")
    g("s_waitcnt vmcnt(0) lgkmcnt(0)")
    g.stamp(9)
    for st in range(7):
        for cb in range(4):
            g(f"v_mfma_f32_16x16x32_bf16 {R(D+4*cb,4)}, {R(AB+28*cb+4*st,4)}, {R(XR+4*st,4)}, {'0' if st==0 else R(D+4*cb,4)}")
    g("s_nop 7")
    mh=s('MASK',2,0); mc=s('MASK',2,2)
    for pr in range(2):
        n0=2*pr; n1=2*pr+1; base=V['T']+8+4*pr
        for e in range(2):
            g(f"v_cndmask_b32 {T(6)}, {R(D+4*n0+e)}, {R(D+4*n0+2+e)}, {mh}\nv_cndmask_b32 {T(7)}, {R(D+4*n1+e)}, {R(D+4*n1+2+e)}, {mh}\nv_cndmask_b32 {R(base+2*e)}, {T(6)}, {T(7)}, {mc}")
        g(f"buffer_store_dwordx4 {R(base,4)}, {T(5)}, {s('SRDW',4)}, {s('T0')} offen offset:{pr*256} sc1")
    g.stamp(2)

def cw_qrecv_v2(g):
    g.c("receive q")
    L=v('LANE'); KB=V['KB']
    g(f"v_lshlrev_b32 {T(0)}, 6, {L}")
    g(f"s_lshl_b32 {s('T0')}, {s('TEAM')}, 13\ns_add_u32 {s('T0')}, {s('T0')}, {WS_QG}\ns_add_u32 {s('T1')}, {s('T0')}, 4096")
    lp=g.lab("Lqr")
    if g.cfg.get('qdelay'): g(f"s_sleep {g.cfg['qdelay']}")
    g(f"s_mov_b32 {s('SPIN')}, 0\n{lp}:")
    for k in range(2):
        for n in range(4):
            g(f"buffer_load_dwordx4 {R(KB+16*k+4*n,4)}, {T(0)}, {s('SRDW',4)}, {s('T0') if k==0 else s('T1')} offen offset:{16*n} sc1")
    g("s_waitcnt vmcnt(0)")
    g(f"v_xor_b32 {T(1)}, {s('TAG')}, {R(KB+1)}")
    for n in range(1,16): g(f"v_xor_b32 {T(2)}, {s('TAG')}, {R(KB+1+2*n)}\nv_or_b32 {T(1)}, {T(1)}, {T(2)}")
    g(f"v_cmp_ne_u32 vcc, 0, {T(1)}\ns_add_u32 {s('SPIN')}, {s('SPIN')}, 1\ns_cmp_gt_u32 {s('SPIN')}, {SPIN_MAX}\ns_cbranch_scc1 {lp}_x")
    g(f"s_cbranch_vccz {lp}_x\ns_sleep {g.cfg.get('qsleep',2)}\ns_branch {lp}\n{lp}_x:")
    for e in range(8): g(f"v_add_f32 {R(KB+2*e)}, {R(KB+2*e)}, {R(KB+16+2*e)}")
    for e in range(4): g(f"v_cvt_pk_bf16_f32 {T(4+e)}, {R(KB+4*e)}, {R(KB+4*e+2)}")
    g(f"v_lshlrev_b32 {T(0)}, 4, {L}\nv_add_u32 {T(0)}, {L_Q}, {T(0)}\nds_write_b128 {T(0)}, {T(4,4)}")
    g("s_waitcnt lgkmcnt(0)")
    g(f"v_mov_b32 {T(0)}, {L_QF}\nv_mov_b32 {T(1)}, 1\nds_write_b32 {T(0)}, {T(1)}")
    g.stamp(3)

def issue_wq_dma_v1(g):
    g.c("wq slice DMA (7 x 1KB per wave): 448 rows x 64 B")
    srd(g,'SRDA','WQ',448*8192)
    L=v('LANE')
    g(f"v_lshrrev_b32 {T(0)}, 2, {L}\nv_lshlrev_b32 {T(0)}, 13, {T(0)}")
    g(f"v_and_b32 {T(1)}, 3, {L}\nv_lshl_add_u32 {T(0)}, {T(1)}, 4, {T(0)}")
    g(f"s_lshl_b32 {s('T0')}, {s('HKV')}, 10\ns_lshl_b32 {s('T1')}, {s('C')}, 6\ns_add_u32 {s('T0')}, {s('T0')}, {s('T1')}")
    g(f"s_mul_i32 {s('T1')}, {s('WAVE')}, {7*131072}\ns_add_u32 {s('T0')}, {s('T0')}, {s('T1')}")
    g(f"s_mul_i32 {s('T1')}, {s('WAVE')}, {7*1024}\ns_add_u32 {s('T1')}, {s('T1')}, {AUX}")
    for n in range(7):
        g(f"s_mov_b32 m0, {s('T1')}\ns_add_u32 {s('T1')}, {s('T1')}, 1024")
        g(f"buffer_load_dwordx4 {T(0)}, {s('SRDA',4)}, {s('T0')} offen {g.cfg.get('wqpol','nt')} lds")
        g(f"s_add_u32 {s('T0')}, {s('T0')}, 131072")
    g.vm_issue('wq',7)

def cw_qproj_v1(g):
    L=v('LANE'); XR=V['Q']
    g.c("x operand loads")
    srd(g,'SRDA','X',4*896)
    g(f"v_and_b32 {T(0)}, 3, {L}\nv_mul_u32_u24 {T(0)}, 896, {T(0)}\nv_lshrrev_b32 {T(1)}, 4, {L}\nv_lshl_add_u32 {T(0)}, {T(1)}, 4, {T(0)}")
    for st in range(14):
        g(f"buffer_load_dwordx4 {R(XR+4*st,4)}, {T(0)}, {s('SRDA',4)}, 0 offen offset:{st*64} {g.cfg.get('xpol','nt')}")
    g("s_waitcnt lgkmcnt(0)\ns_barrier")
    g.stamp(1)
    g(f"v_and_b32 {T(2)}, 15, {L}\nv_lshrrev_b32 {T(3)}, 2, {T(2)}\nv_and_b32 {T(4)}, 3, {T(2)}")
    g(f"v_lshl_add_u32 {T(3)}, {T(1)}, 3, {T(3)}\nv_lshlrev_b32 {T(3)}, 6, {T(3)}\nv_lshl_add_u32 {T(3)}, {T(4)}, 3, {T(3)}\nv_add_u32 {T(3)}, {AUX}, {T(3)}")
    AB=V['QA']
    D=V['O']
    for cb in range(2):
        for st in range(14):
            g(f"ds_read_b64_tr_b16 {R(AB+56*cb+4*st,2)}, {T(3)} offset:{st*2048+cb*32}")
            g(f"ds_read_b64_tr_b16 {R(AB+56*cb+4*st+2,2)}, {T(3)} offset:{st*2048+cb*32+256}")
    g(f"v_lshlrev_b32 {T(5)}, 16, {T(4)}\nv_bfe_u32 {T(6)}, {T(2)}, 2, 1\nv_lshl_add_u32 {T(5)}, {T(6)}, 6, {T(5)}\nv_lshl_add_u32 {T(5)}, {T(1)}, 4, {T(5)}")
    g(f"s_lshl_b32 {s('T0')}, {s('BR')}, 5\ns_add_u32 {s('T0')}, {s('T0')}, {s('HKV')}\ns_lshl_b32 {s('T0')}, {s('T0')}, 13\ns_add_u32 {s('T0')}, {s('T0')}, {WS_QG}")
    g(f"s_lshl_b32 {s('T1')}, {s('C')}, 7\ns_add_u32 {s('T0')}, {s('T0')}, {s('T1')}")
    g(f"s_mov_b32 {s('MASK',1,0)}, 0xf0f0f0f0\ns_mov_b32 {s('MASK',1,1)}, 0xf0f0f0f0")
    get_tag(g)
    g(f"v_mov_b32 {T(9)}, {s('TAG')}\nv_mov_b32 {T(11)}, {s('TAG')}")
    g("s_waitcnt vmcnt(0) lgkmcnt(0)")
    g.stamp(9)
    for st in range(14):
        for cb in range(2):
            g(f"v_mfma_f32_16x16x32_bf16 {R(D+4*cb,4)}, {R(AB+56*cb+4*st,4)}, {R(XR+4*st,4)}, {'0' if st==0 else R(D+4*cb,4)}")
    g("s_nop 7")
    mh=s('MASK',2,0)
    for cb in range(2):
        g(f"v_cvt_pk_bf16_f32 {T(12+2*cb)}, {R(D+4*cb)}, {R(D+4*cb+1)}\nv_cvt_pk_bf16_f32 {T(13+2*cb)}, {R(D+4*cb+2)}, {R(D+4*cb+3)}")
    g(f"v_cndmask_b32 {T(8)}, {T(12)}, {T(14)}, {mh}\nv_cndmask_b32 {T(10)}, {T(13)}, {T(15)}, {mh}")
    g(f"s_mov_b64 {s('EX',2)}, exec\ns_mov_b32 exec_lo, 0x00ff00ff\ns_mov_b32 exec_hi, 0x00ff00ff")
    g(f"buffer_store_dwordx4 {T(8,4)}, {T(5)}, {s('SRDW',4)}, {s('T0')} offen sc1")
    g(f"s_mov_b64 exec, {s('EX',2)}")
    g.stamp(2)

def cw_qrecv_v1(g):
    g.c("receive q")
    L=v('LANE'); KB=V['KB']
    g(f"v_lshlrev_b32 {T(0)}, 5, {L}")
    g(f"s_lshl_b32 {s('T0')}, {s('TEAM')}, 13\ns_add_u32 {s('T0')}, {s('T0')}, {WS_QG}")
    lp=g.lab("Lqr")
    if g.cfg.get('qdelay'): g(f"s_sleep {g.cfg['qdelay']}")
    g(f"s_mov_b32 {s('SPIN')}, 0\n{lp}:")
    g(f"buffer_load_dwordx4 {R(KB,4)}, {T(0)}, {s('SRDW',4)}, {s('T0')} offen sc1")
    g(f"buffer_load_dwordx4 {R(KB+4,4)}, {T(0)}, {s('SRDW',4)}, {s('T0')} offen offset:16 sc1")
    g("s_waitcnt vmcnt(0)")
    g(f"v_xor_b32 {T(1)}, {s('TAG')}, {R(KB+1)}")
    for n in range(1,4): g(f"v_xor_b32 {T(2)}, {s('TAG')}, {R(KB+1+2*n)}\nv_or_b32 {T(1)}, {T(1)}, {T(2)}")
    g(f"v_cmp_ne_u32 vcc, 0, {T(1)}\ns_add_u32 {s('SPIN')}, {s('SPIN')}, 1\ns_cmp_gt_u32 {s('SPIN')}, {SPIN_MAX}\ns_cbranch_scc1 {lp}_x")
    g(f"s_cbranch_vccz {lp}_x\ns_sleep {g.cfg.get('qsleep',2)}\ns_branch {lp}\n{lp}_x:")
    g(f"v_mov_b32 {T(4)}, {R(KB)}\nv_mov_b32 {T(5)}, {R(KB+2)}\nv_mov_b32 {T(6)}, {R(KB+4)}\nv_mov_b32 {T(7)}, {R(KB+6)}")
    g(f"v_lshlrev_b32 {T(0)}, 4, {L}\nv_add_u32 {T(0)}, {L_Q}, {T(0)}\nds_write_b128 {T(0)}, {T(4,4)}")
    g("s_waitcnt lgkmcnt(0)")
    g(f"v_mov_b32 {T(0)}, {L_QF}\nv_mov_b32 {T(1)}, 1\nds_write_b32 {T(0)}, {T(1)}")
    g.stamp(3)

def issue_wq_dma(g): (issue_wq_dma_v2 if g.cfg.get('qv')==2 else issue_wq_dma_v1)(g)
def cw_qproj(g): (cw_qproj_v2 if g.cfg.get('qv')==2 else cw_qproj_v1)(g)
def cw_qrecv(g): (cw_qrecv_v2 if g.cfg.get('qv')==2 else cw_qrecv_v1)(g)

def cw_wo_dma(g):
    g.c("wo slice DMA -> AUX")
    L=v('LANE')
    srd(g,'SRDA','WO',4096*896)
    g(f"v_lshlrev_b32 {T(0)}, 4, {L}")
    g(f"s_lshl_b32 {s('T0')}, {s('HKV')}, 9\ns_lshl_b32 {s('T1')}, {s('C')}, 5\ns_add_u32 {s('T0')}, {s('T0')}, {s('T1')}\ns_mul_i32 {s('T0')}, {s('T0')}, 896")
    g(f"s_mov_b32 {s('T1')}, {AUX}")
    for n in range(28):
        g(f"s_mov_b32 m0, {s('T1')}\ns_add_u32 {s('T1')}, {s('T1')}, 1024")
        g(f"buffer_load_dwordx4 {T(0)}, {s('SRDA',4)}, {s('T0')} offen nt lds")
        g(f"s_add_u32 {s('T0')}, {s('T0')}, 1024")

def cw_pretouch(g):
    g.c("pretouch")
    if g.cfg.get('ptstag'):
        l=g.lab("Lstag")
        g(f"s_and_b32 {s('T0')}, s2, 31\n{l}:\ns_sleep {g.cfg['ptstag']}\ns_sub_u32 {s('T0')}, {s('T0')}, 1\ns_cmp_ge_i32 {s('T0')}, 0\ns_cbranch_scc1 {l}")
    L=v('LANE'); mode=g.cfg.get('pretouch'); pp=g.cfg.get('ptpol','')
    if mode==3:
        g(f"s_mul_i32 {s('T5')}, s2, {PGS}\ns_add_u32 {s('T5')}, {s('T5')}, {WS_PG}")
        g(f"s_add_u32 s46, {s('WS')}, {s('T5')}\ns_addc_u32 s47, {s('WS',1,1)}, 0")
        for i in range(33): g(f"s_load_dword {s('T6')}, s[46:47], {i*128}")
        g(f"s_mul_i32 {s('T0')}, {s('BR')}, 28\ns_lshl_b32 {s('T0')}, {s('T0')}, 7")
        g(f"s_lshl_b32 {s('T1')}, {s('HKV')}, 4\ns_add_u32 {s('T1')}, {s('T1')}, {s('C')}\ns_add_u32 {s('T0')}, {s('T0')}, {s('T1')}\ns_lshl_b32 {s('T0')}, {s('T0')}, 9\ns_add_u32 {s('T0')}, {s('T0')}, {WS_OG}")
        for half in range(2):
            g(f"s_add_u32 s46, {s('WS')}, {s('T0')}\ns_addc_u32 s47, {s('WS',1,1)}, 0")
            for n in range(14):
                for q in range(4): g(f"s_load_dword {s('T6')}, s[46:47], {n*65536+q*128}")
            g(f"s_add_u32 {s('T0')}, {s('T0')}, {14*65536}")
        g("s_waitcnt lgkmcnt(0)")
        return
    g(f"s_not_b32 {s('T0')}, {s('TAG')}")
    for i in range(4): g(f"v_mov_b32 {T(4+i)}, {s('T0')}")
    g(f"v_lshlrev_b32 {T(0)}, 4, {L}")
    g(f"s_mul_i32 {s('T5')}, s2, {PGS}\ns_add_u32 {s('T5')}, {s('T5')}, {WS_PG}")
    KB=V['KB']
    def op(i,addr,so,off=0):
        if mode==1: g(f"buffer_store_dwordx4 {T(4,4)}, {addr}, {s('SRDW',4)}, {so} offen offset:{off} sc1")
        else: g(f"buffer_load_dwordx4 {R(KB+4*i,4)}, {addr}, {s('SRDW',4)}, {so} offen offset:{off} {pp}")
    for i in range(4): op(i,T(0),s('T5'),i*1024)
    g(f"s_add_u32 {s('T5')}, {s('T5')}, 4096\ns_mov_b64 exec, 3")
    op(4,T(0),s('T5'))
    g("s_mov_b64 exec, -1")
    g(f"v_lshrrev_b32 {T(1)}, 5, {L}\nv_lshlrev_b32 {T(1)}, 16, {T(1)}\nv_and_b32 {T(2)}, 31, {L}\nv_lshl_add_u32 {T(1)}, {T(2)}, 4, {T(1)}")
    g(f"s_mul_i32 {s('T0')}, {s('BR')}, 28\ns_lshl_b32 {s('T0')}, {s('T0')}, 7")
    g(f"s_lshl_b32 {s('T1')}, {s('HKV')}, 4\ns_add_u32 {s('T1')}, {s('T1')}, {s('C')}\ns_add_u32 {s('T0')}, {s('T0')}, {s('T1')}\ns_lshl_b32 {s('T0')}, {s('T0')}, 9\ns_add_u32 {s('T0')}, {s('T0')}, {WS_OG}")
    for i in range(14):
        op(5+i,T(1),s('T0')); g(f"s_add_u32 {s('T0')}, {s('T0')}, 131072")

def cw_tickets(g):
    g.c("ticket service")
    NS=g.cfg['NS']; POOL=(32-NS)*16; kn=g.kn; L=v('LANE')
    g(f"v_mov_b32 {T(0)}, 0")
    g(f"s_lshl_b32 {s('T0')}, {s('TEAM')}, 8\ns_add_u32 {s('T0')}, {s('T0')}, {WS_CNT}\nv_mov_b32 {T(1)}, {s('T0')}")
    g(f"v_lshlrev_b32 {T(2)}, 2, {L}\nv_add_u32 {T(2)}, {L_REQ}, {T(2)}")
    g(f"v_lshlrev_b32 {T(3)}, 5, {L}\nv_add_u32 {T(3)}, {L_TK}, {T(3)}")
    g(f"s_mov_b64 {s('ACT',2)}, 0xf\ns_mov_b32 {s('SPIN')}, 0")
    g(f"L_twl_{kn}:")
    g(f"s_mov_b64 exec, {s('ACT',2)}")
    g(f"s_add_u32 {s('SPIN')}, {s('SPIN')}, 1\ns_cmp_gt_u32 {s('SPIN')}, {SPIN_MAX*4}\ns_cbranch_scc1 L_twe_{kn}")
    g(f"ds_read_b32 {T(4)}, {T(2)}\ns_waitcnt lgkmcnt(0)\nv_add_u32 {T(4)}, 1, {T(4)}")
    g(f"v_cmp_lt_u32 vcc, {T(0)}, {T(4)}\ns_nop 1\ns_and_b64 exec, exec, vcc\ns_cbranch_execz L_tws_{kn}")
    g(f"v_mov_b32 {T(5)}, 1\nbuffer_atomic_add {T(5)}, {T(1)}, {s('SRDW',4)}, 0 offen sc0 sc1\ns_waitcnt vmcnt(0)")
    g(f"v_cmp_gt_u32 vcc, {POOL}, {T(5)}\nv_mov_b32 {T(6)}, {END_TK}\ns_nop 1\nv_cndmask_b32 {T(6)}, {T(6)}, {T(5)}, vcc")
    g(f"v_and_b32 {T(7)}, 7, {T(0)}\nv_lshl_add_u32 {T(7)}, {T(7)}, 2, {T(3)}\nv_add_u32 {T(0)}, 1, {T(0)}\nv_lshl_or_b32 {T(6)}, {T(0)}, 12, {T(6)}")
    g(f"ds_write_b32 {T(7)}, {T(6)}")
    g(f"v_cmp_le_u32 vcc, {POOL}, {T(5)}\ns_nop 1\ns_andn2_b64 {s('ACT',2)}, {s('ACT',2)}, vcc")
    g(f"s_cmp_eq_u64 {s('ACT',2)}, 0\ns_cbranch_scc1 L_twe_{kn}\ns_branch L_twl_{kn}")
    g(f"L_tws_{kn}:\ns_sleep 2\ns_branch L_twl_{kn}")
    g(f"L_twe_{kn}:\ns_mov_b64 exec, -1\ns_waitcnt vmcnt(0) lgkmcnt(0)")

def hop2(g):
    g.c("hop2")
    L=v('LANE'); KB=V['KB']; kn=g.kn
    g(f"s_cmp_ge_u32 {s('WL')}, 112\ns_cbranch_scc1 L_fin_{kn}")
    g(f"v_lshrrev_b32 {T(0)}, 3, {L}\nv_lshlrev_b32 {T(0)}, 9, {T(0)}\nv_and_b32 {T(1)}, 7, {L}\nv_lshl_add_u32 {T(0)}, {T(1)}, 4, {T(0)}")
    g(f"s_mul_i32 {s('T0')}, {s('BR')}, 28\ns_lshr_b32 {s('T1')}, {s('WL')}, 2\ns_add_u32 {s('T0')}, {s('T0')}, {s('T1')}\ns_lshl_b32 {s('T0')}, {s('T0')}, 16")
    g(f"s_and_b32 {s('T2')}, {s('WL')}, 3\ns_lshl_b32 {s('T2')}, {s('T2')}, 7\ns_add_u32 {s('T0')}, {s('T0')}, {s('T2')}\ns_add_u32 {s('T0')}, {s('T0')}, {WS_OG}")
    lp=g.lab("Lh2")
    if g.cfg.get('h2delay'): g(f"s_sleep {g.cfg['h2delay']}")
    g(f"s_mov_b32 {s('SPIN')}, 0\n{lp}:\ns_mov_b32 {s('T5')}, {s('T0')}")
    for i in range(16):
        g(f"buffer_load_dwordx4 {R(KB+4*i,4)}, {T(0)}, {s('SRDW',4)}, {s('T5')} offen sc1\ns_add_u32 {s('T5')}, {s('T5')}, 4096")
    g("s_waitcnt vmcnt(0)")
    g(f"v_xor_b32 {T(2)}, {s('TAG')}, {R(KB+1)}")
    for n in range(1,32): g(f"v_xor_b32 {T(3)}, {s('TAG')}, {R(KB+1+2*n)}\nv_or_b32 {T(2)}, {T(2)}, {T(3)}")
    g(f"v_cmp_ne_u32 vcc, 0, {T(2)}\ns_add_u32 {s('SPIN')}, {s('SPIN')}, 1\ns_cmp_gt_u32 {s('SPIN')}, {SPIN_MAX}\ns_cbranch_scc1 {lp}_x")
    g(f"s_cbranch_vccz {lp}_x\ns_sleep 2\ns_branch {lp}\n{lp}_x:")
    g.stamp(6)
    if g.cfg.get('stamps'): g(f"s_mov_b32 s{S['ST']+18}, {s('SPIN')}\ns_mov_b32 s{S['ST']+19}, 0")
    g(f"v_mov_b32 {T(4)}, {R(KB)}\nv_mov_b32 {T(5)}, {R(KB+2)}")
    for i in range(1,16): g(f"v_add_f32 {T(4)}, {T(4)}, {R(KB+4*i)}\nv_add_f32 {T(5)}, {T(5)}, {R(KB+4*i+2)}")
    for rg in (T(4),T(5)):
        g(f"s_nop 1\nv_mov_b32_dpp {T(6)}, {rg} row_ror:8 row_mask:0xf bank_mask:0xf\nv_add_f32 {rg}, {rg}, {T(6)}")
        xlane(g,rg,"v_add_f32",T(6),T(7))
    g(f"v_cvt_pk_bf16_f32 {T(4)}, {T(4)}, {T(5)}")
    srd(g,'SRDA','OUT',4*896*2)
    g(f"v_lshlrev_b32 {T(6)}, 2, {T(1)}")
    g(f"s_mul_i32 {s('T0')}, {s('BR')}, 448\ns_lshr_b32 {s('T1')}, {s('WL')}, 2\ns_lshl_b32 {s('T1')}, {s('T1')}, 4\ns_add_u32 {s('T0')}, {s('T0')}, {s('T1')}\ns_lshl_b32 {s('T0')}, {s('T0')}, 1")
    g(f"s_and_b32 {s('T1')}, {s('WL')}, 3\ns_mul_i32 {s('T1')}, {s('T1')}, {896*2}\ns_add_u32 {s('T0')}, {s('T0')}, {s('T1')}")
    g(f"s_mov_b64 exec, 0xff")
    g(f"buffer_store_dword {T(4)}, {T(6)}, {s('SRDA',4)}, {s('T0')} offen")
    g(f"s_cmp_lg_u32 {s('WL')}, 0\ns_cbranch_scc1 L_fin_{kn}")
    g(f"s_add_u32 {s('T0')}, {s('E')}, 1\nv_mov_b32 {T(8)}, {s('T0')}\ns_lshl_b32 {s('T1')}, {s('BR')}, 8\nv_mov_b32 {T(9)}, {s('T1')}\ns_mov_b64 exec, 1")
    g(f"buffer_store_dword {T(8)}, {T(9)}, {s('SRDW',4)}, 0 offen offset:{WS_E}")

def dbg_stamps(g):
    g("s_mov_b64 exec, -1\ns_waitcnt lgkmcnt(0)")
    g("s_load_dwordx2 s[46:47], s[0:1], 88\ns_waitcnt lgkmcnt(0)")
    g(f"s_mov_b32 {s('SRDA',1,0)}, s46\ns_mov_b32 {s('SRDA',1,1)}, s47\ns_mov_b32 {s('SRDA',1,2)}, 256\ns_mov_b32 {s('SRDA',1,3)}, 0x20000")
    g(f"v_mov_b32 {T(0)}, 0\ns_mov_b64 exec, 1")
    for i in range(8):
        g(f"v_mov_b32 {T(4)}, s{S['ST']+2*i}\nbuffer_atomic_umax {T(4)}, {T(0)}, {s('SRDA',4)}, 0 offen offset:{4*i} sc1\ns_nop 1")
    g(f"s_not_b32 {s('T0')}, s{S['ST']}\nv_mov_b32 {T(4)}, {s('T0')}\nbuffer_atomic_umax {T(4)}, {T(0)}, {s('SRDA',4)}, 0 offen offset:40 sc1")

def write_stamps(g, wave_sel):
    if not g.cfg.get('stamps'): return
    g("s_mov_b64 exec, -1\ns_waitcnt lgkmcnt(0)")
    g(f"s_mul_i32 {s('T0')}, s2, 160\ns_add_u32 {s('T0')}, {s('T0')}, {WS_STAMP+wave_sel*65536}\nv_mov_b32 {T(0)}, 0\ns_mov_b64 exec, 1")
    for i in range(0,20,4):
        for k in range(4): g(f"v_mov_b32 {T(4+k)}, s{S['ST']+i+k}")
        g(f"buffer_store_dwordx4 {T(4,4)}, {T(0)}, {s('SRDW',4)}, {s('T0')} offen offset:{i*4}\ns_nop 1")

def kernel(g, kn, sections):
    g.kn=kn
    g(f".text\n.globl {kn}\n.p2align 8\n.type {kn},@function\n{kn}:")
    if g.cfg.get('stamps'):
        for i in range(20): g(f"s_mov_b32 s{S['ST']+i}, 0")
    prologue(g)
    g(f"s_cmp_eq_u32 {s('WAVE')}, 4\ns_cbranch_scc1 L_cw_{kn}")
    st='stream' in sections; qp='qproj' in sections
    if st:
        stream_waves(g, qp)
    else:
        if qp:
            g.q=[]; issue_wq_dma(g); g.vm_wait('wq'); g("s_barrier")
        get_tag(g)
        if 'hop1' in sections: g("s_barrier")
    if 'hop1' in sections: hop1_proj(g)
    if g.cfg.get('stamps'):
        g.stamp(7)
        l=g.lab("Lst"); g(f"s_cmp_lg_u32 {s('WAVE')}, 0\ns_cbranch_scc1 L_end_{kn}")
        write_stamps(g,0)
    g(f"s_branch L_end_{kn}")
    g(f"L_cw_{kn}:")
    cw_init(g, do_cnt=qp)
    if qp: cw_qproj(g)
    else:
        if st: g("s_waitcnt lgkmcnt(0)\ns_barrier")
        get_tag(g)
    if st:
        cw_qrecv(g)
    if 'hop1' in sections: cw_wo_dma(g)
    if st and g.cfg.get('pretouch'): cw_pretouch(g)
    if st: cw_tickets(g)
    if st or 'hop1' in sections:
        g("s_waitcnt vmcnt(0) lgkmcnt(0)\ns_barrier")
    g.stamp(4)
    if 'hop1' in sections: hop1_gather(g)
    if 'hop2' in sections: hop2(g)
    g(f"L_fin_{kn}:")
    if g.cfg.get('stamps'):
        g.stamp(7)
        if g.cfg.get('dbgst'): dbg_stamps(g)
        else: write_stamps(g,1)
    g(f"L_end_{kn}:\ns_endpgm")
    g(f""".section .rodata,"a"
.p2align 6
.amdhsa_kernel {kn}
.amdhsa_next_free_vgpr 256
.amdhsa_next_free_sgpr 102
.amdhsa_accum_offset 256
.amdhsa_group_segment_fixed_size 0
.amdhsa_kernarg_size 104
.amdhsa_user_sgpr_count 2
.amdhsa_user_sgpr_kernarg_segment_ptr 1
.amdhsa_system_sgpr_workgroup_id_x 1
.end_amdhsa_kernel""")

HEADER=open(os.path.join(os.path.dirname(os.path.abspath(__file__)),"header.txt")).read()

def build(cfg, plan, path):
    g=Gen(cfg)
    for kn,sec in plan: kernel(g,kn,sec)
    hdr=HEADER
    if len(plan)==1: hdr+=f"; @launch grid=(256,1,1) block=(320,1,1) lds={LDS_TOTAL}\n"
    else:
        for kn,sec in plan: hdr+=f"; @launch kernel={kn} grid=(256,1,1) block=(320,1,1) lds={LDS_TOTAL}\n"
    src=hdr+'.amdgcn_target "amdgcn-amd-amdhsa--gfx950"\n'+"\n".join(g.L)+"\n"
    open(path,"w").write(src)
    return src

def assemble(path_s, kernels):
    src=open(path_s).read()
    md=".amdgpu_metadata\n---\namdhsa.version: [1, 2]\namdhsa.kernels:\n"
    for k in kernels:
        md+=f"""  - .name: {k}
    .symbol: {k}.kd
    .kernarg_segment_size: 104
    .kernarg_segment_align: 8
    .group_segment_fixed_size: 0
    .private_segment_fixed_size: 0
    .wavefront_size: 64
    .sgpr_count: 102
    .vgpr_count: 256
    .max_flat_workgroup_size: 320
    .args:
      - {{.name: kernargs, .size: 104, .offset: 0, .value_kind: by_value}}
"""
    md+="...\n.end_amdgpu_metadata\n"
    open(path_s+".h.s","w").write(src+md)
    co=path_s[:-2]+".co"
    r=subprocess.run(["clang","-x","assembler","-target","amdgcn-amd-amdhsa","-mcpu=gfx950",path_s+".h.s","-o",co],capture_output=True,text=True)
    if r.returncode: print(r.stderr[:3000]); raise SystemExit(1)
    return co

if __name__=="__main__":
    cfg=dict(NS=26,B=8,predrain=2,pol="nt")
    out=sys.argv[1] if len(sys.argv)>1 else "."
    plan=[("q_kernel",["qproj"]),("s_kernel",["stream"]),("h1_kernel",["hop1"]),("h2_kernel",["hop2"])]
    build(dict(cfg),plan,f"{out}/split.s"); assemble(f"{out}/split.s",[k for k,_ in plan])
    plan=[(NAME+"_kernel",["qproj","stream","hop1","hop2"])]
    build(dict(cfg),plan,f"{out}/fused.s"); assemble(f"{out}/fused.s",[k for k,_ in plan])
    print("ok")
```

```python
import sys, os, subprocess, struct

NAME="concat_heads__gqa_block_cached__gqa_block_cached__decode"
def f2u(f): return struct.unpack("<I",struct.pack("<f",f))[0]

WS_E    = 0
WS_CNT  = 4096
WS_QG   = 0x10000
WS_PG   = 0x90000
PGS     = 4608
WS_OG   = 0x200000
WS_USED = 0x580000
WS_STAMP= 512<<20
SLOT=8192
RING=4*4*SLOT
AUX=RING
MISC=AUX+28672
L_Q   = MISC
L_TK  = MISC+1024
L_REQ = MISC+1152
L_QF  = MISC+1168
LDS_TOTAL=163840
C_SCALE = 0.09016844005555896
END_TK=0xFFF
SPIN_MAX=400000

S=dict(WG=2, WAVE=3, BR=4, TP=5, MEM=6, C=7,
 X=8, K=10, V=12, WQ=14, WO=16, OUT=18, WS=20, TAG=22, E=23,
 SRDK=24, SRDV=28, SRDA=32, SRDW=36,
 OFF=40, OFF4=41, LB=42, T0=43, T1=44, T2=45, P0=46, P1=47,
 MASK=48, WBASE=64, TKI=65, MBX=66, SPIN=67, TEAM=68, B=69, HKV=70, WL=71,
 EX=72, ACT=74, ST=76, CS=96, T5=97, T6=98, T7=99, NUNIT=100)
def s(n,k=1,o=0):
    b=S[n]+o
    return f"s{b}" if k==1 else f"s[{b}:{b+k-1}]"
V=dict(TID=0, LANE=1, D=2, KA=6, VA=10, M=18, L=19, T=20, O=36, A=44, Q=60, KB=92, VB=92, SS=124, KB2=220, X0=220, QA=116, TM=252, NM=253, CT=160, KB3=188)
def v(n,i=0,k=1):
    b=V[n]+i
    return f"v{b}" if k==1 else f"v[{b}:{b+k-1}]"
def T(i,k=1): return v('T',i,k)
def R(b,k=1): return f"v{b}" if k==1 else f"v[{b}:{b+k-1}]"

class Gen:
    def __init__(self, cfg):
        self.cfg=cfg; self.L=[]; self.uid=0; self.q=[]
    def __call__(self,t):
        for l in t.split("\n"):
            l=l.strip()
            if l: self.L.append(("" if l.endswith(":") else "  ")+l)
    def lab(self,b="L"):
        self.uid+=1; return f"{b}_{self.kn}_{self.uid}"
    def c(self,t): self.L.append("  ; "+t)
    def vm_issue(self,tag,n): self.q.append([tag,n])
    def vm_wait(self,tag):
        idx=max(i for i,(t,n) in enumerate(self.q) if t==tag)
        n=sum(x[1] for x in self.q[idx+1:])
        assert n<=63
        self(f"s_waitcnt vmcnt({n})")
        self.q=self.q[idx+1:]
    def stamp(self,i):
        if self.cfg.get("stamps"):
            self(f"s_memrealtime s[{S['ST']+2*i}:{S['ST']+2*i+1}]")

def srd(g, name, ptr, size, off=None):
    if off is None:
        g(f"s_mov_b32 {s(name,1,0)}, {s(ptr,1,0)}\ns_mov_b32 {s(name,1,1)}, {s(ptr,1,1)}")
    else:
        g(f"s_add_u32 {s(name,1,0)}, {s(ptr,1,0)}, {off}\ns_addc_u32 {s(name,1,1)}, {s(ptr,1,1)}, 0")
    g(f"s_mov_b32 {s(name,1,2)}, {size}\ns_mov_b32 {s(name,1,3)}, 0x20000")

def prologue(g):
    g(f"s_cmp_ge_u32 s2, 256\ns_cbranch_scc1 L_end_{g.kn}")
    g.stamp(0)
    pm=g.cfg.get('perm',0)
    if pm:
        g(f"s_bfe_u32 {s('T0')}, s2, 0x50002\ns_and_b32 {s('T1')}, s2, 3\ns_and_b32 {s('T2')}, s2, 128")
        if pm in (1,3): g(f"s_add_u32 {s('T1')}, {s('T1')}, {s('T0')}\ns_and_b32 {s('T1')}, {s('T1')}, 3")
        if pm in (4,): g(f"s_lshr_b32 {s('T5')}, {s('T0')}, 1\ns_add_u32 {s('T1')}, {s('T1')}, {s('T5')}\ns_and_b32 {s('T1')}, {s('T1')}, 3")
        if pm in (2,3,4): g(f"s_lshr_b32 {s('T5')}, {s('T0')}, 1\ns_and_b32 {s('T0')}, {s('T0')}, 1\ns_lshl_b32 {s('T0')}, {s('T0')}, 4\ns_or_b32 {s('T0')}, {s('T0')}, {s('T5')}")
        if pm==5:
            g(f"s_lshr_b32 {s('T5')}, {s('T0')}, 1\ns_and_b32 {s('T0')}, {s('T0')}, 1\ns_lshr_b32 {s('T2')}, {s('T2')}, 3\ns_or_b32 {s('T5')}, {s('T5')}, {s('T2')}\ns_lshl_b32 {s('T2')}, {s('T0')}, 7\ns_mov_b32 {s('T0')}, {s('T5')}")
        g(f"s_lshl_b32 {s('T0')}, {s('T0')}, 2\ns_or_b32 {s('T0')}, {s('T0')}, {s('T1')}\ns_or_b32 s2, {s('T0')}, {s('T2')}")
    g(f"s_lshr_b32 {s('BR')}, s2, 7\ns_mul_i32 {s('T0')}, {s('BR')}, 40")
    g(f"s_add_u32 s46, s0, {s('T0')}\ns_addc_u32 s47, s1, 0")
    g("s_load_dwordx8 s[8:15], s[46:47], 0\ns_load_dwordx2 s[16:17], s[46:47], 32")
    g("s_load_dwordx2 s[18:19], s[0:1], 80\ns_load_dwordx2 s[20:21], s[0:1], 96")
    g(f"v_and_b32 {v('LANE')}, 63, v0\nv_lshrrev_b32 {T(0)}, 6, v0")
    g(f"s_lshr_b32 {s('TEAM')}, s2, 2\ns_and_b32 {s('TP')}, {s('TEAM')}, 31")
    g(f"v_readfirstlane_b32 {s('WAVE')}, {T(0)}")
    g(f"s_and_b32 {s('MEM')}, s2, 3\ns_and_b32 {s('WL')}, s2, 127")
    g(f"s_lshr_b32 {s('B')}, {s('TP')}, 3\ns_and_b32 {s('HKV')}, {s('TP')}, 7")
    g(f"s_lshl_b32 {s('C')}, {s('MEM')}, 2\ns_add_u32 {s('C')}, {s('C')}, {s('B')}")
    g(f"s_mov_b32 {s('CS')}, {f2u(C_SCALE):#x}")
    g("s_waitcnt lgkmcnt(0)")
    g(f"s_lshl_b32 {s('T0')}, {s('BR')}, 8")
    g(f"s_add_u32 s46, {s('WS')}, {s('T0')}\ns_addc_u32 s47, {s('WS',1,1)}, 0")
    g(f"s_load_dword {s('E')}, s[46:47], {WS_E}")
    srd(g,'SRDW','WS', WS_USED if (not g.cfg.get('stamps') or g.cfg.get('dbgst')) else 0x30000000)

def get_tag(g):
    g("s_waitcnt lgkmcnt(0)")
    g(f"s_mul_i32 {s('TAG')}, {s('E')}, 0x9E3779B1\ns_add_u32 {s('TAG')}, {s('TAG')}, 0x7F4A7C15")

def issue_wq_dma_v2(g):
    g.c("wq slice DMA (7 x 1KB per wave): 224 rows x 128 B")
    srd(g,'SRDA','WQ',448*8192)
    L=v('LANE')
    g(f"v_lshrrev_b32 {T(0)}, 3, {L}\nv_lshlrev_b32 {T(0)}, 13, {T(0)}")
    g(f"v_and_b32 {T(1)}, 7, {L}\nv_lshl_add_u32 {T(0)}, {T(1)}, 4, {T(0)}")
    g(f"s_lshl_b32 {s('T0')}, {s('HKV')}, 10\ns_lshr_b32 {s('T1')}, {s('C')}, 1\ns_lshl_b32 {s('T1')}, {s('T1')}, 7\ns_add_u32 {s('T0')}, {s('T0')}, {s('T1')}")
    g(f"s_and_b32 {s('T1')}, {s('C')}, 1\ns_mul_i32 {s('T1')}, {s('T1')}, {224*8192}\ns_add_u32 {s('T0')}, {s('T0')}, {s('T1')}")
    g(f"s_mul_i32 {s('T1')}, {s('WAVE')}, {56*8192}\ns_add_u32 {s('T0')}, {s('T0')}, {s('T1')}")
    g(f"s_mul_i32 {s('T1')}, {s('WAVE')}, {7*1024}\ns_add_u32 {s('T1')}, {s('T1')}, {AUX}")
    for n in range(7):
        g(f"s_mov_b32 m0, {s('T1')}\ns_add_u32 {s('T1')}, {s('T1')}, 1024")
        g(f"buffer_load_dwordx4 {T(0)}, {s('SRDA',4)}, {s('T0')} offen {g.cfg.get('wqpol','nt')} lds")
        g(f"s_add_u32 {s('T0')}, {s('T0')}, 65536")
    g.vm_issue('wq',7)

def stream_setup1(g):
    g.c("stream setup 1")
    g(f"s_lshl_b32 {s('T0')}, {s('TP')}, 22")
    srd(g,'SRDK','K',4<<20,s('T0')); srd(g,'SRDV','V',4<<20,s('T0'))
    L=v('LANE')
    g(f"v_lshrrev_b32 {T(2)}, 5, {L}\nv_and_b32 {T(3)}, 31, {L}")
    for t in range(4):
        g(f"v_add_u32 {T(4)}, {2*t}, {T(2)}\nv_lshlrev_b32 {T(4)}, 1, {T(4)}\nv_xor_b32 {T(4)}, {T(4)}, {T(3)}")
        g(f"v_lshlrev_b32 {T(4)}, 4, {T(4)}\nv_lshl_add_u32 {v('D',t)}, {T(2)}, 9, {T(4)}")
    g(f"s_lshl_b32 {s('LB')}, {s('WAVE')}, 15")
    NS=g.cfg['NS']
    if g.cfg.get('lay'):
        g(f"s_lshl_b32 {s('WBASE')}, {s('MEM')}, 7\ns_add_u32 {s('WBASE')}, {s('WBASE')}, {s('WAVE')}\ns_lshl_b32 {s('WBASE')}, {s('WBASE')}, 13")
    else:
        g(f"s_mul_i32 {s('WBASE')}, {s('MEM')}, {NS*4}\ns_add_u32 {s('WBASE')}, {s('WBASE')}, {s('WAVE')}\ns_lshl_b32 {s('WBASE')}, {s('WBASE')}, 13")
    if g.cfg.get('rotb'):
        g(f"s_mul_i32 {s('T7')}, {s('BR')}, {g.cfg['rotb']*32768}")
    elif g.cfg.get('rot'):
        g(f"s_mul_i32 {s('T7')}, s2, {g.cfg['rot']}\ns_and_b32 {s('T7')}, {s('T7')}, 0xfff")
        g(f"s_mul_i32 {s('T2')}, {s('T7')}, {(65536+NS-1)//NS}\ns_lshr_b32 {s('T2')}, {s('T2')}, 16\ns_mul_i32 {s('T2')}, {s('T2')}, {NS}\ns_sub_i32 {s('T7')}, {s('T7')}, {s('T2')}")
        g(f"s_cmp_lt_i32 {s('T7')}, 0\ns_cselect_b32 {s('T2')}, {NS}, 0\ns_add_u32 {s('T7')}, {s('T7')}, {s('T2')}\ns_lshl_b32 {s('T7')}, {s('T7')}, 15")

def stream_setup2(g):
    g.c("stream setup 2")
    L=v('LANE')
    g(f"v_and_b32 {T(0)}, 15, {L}\nv_lshrrev_b32 {T(1)}, 4, {L}")
    g(f"v_and_b32 {T(2)}, 1, {T(0)}\nv_lshlrev_b32 {T(2)}, 1, {T(2)}\nv_xor_b32 {T(2)}, {T(2)}, {T(1)}\nv_lshlrev_b32 {T(2)}, 4, {T(2)}")
    g(f"v_bfe_u32 {T(3)}, {T(0)}, 1, 2\nv_lshlrev_b32 {T(3)}, 6, {T(3)}")
    g(f"v_lshl_add_u32 {T(2)}, {T(0)}, 9, {T(2)}\nv_add_u32 {T(2)}, {T(2)}, {T(3)}")
    for sg in range(4):
        g(f"v_xor_b32 {v('KA',sg)}, {sg*64}, {T(2)}\nv_add_u32 {v('KA',sg)}, {s('LB')}, {v('KA',sg)}")
    g(f"v_lshrrev_b32 {T(2)}, 2, {T(0)}\nv_and_b32 {T(3)}, 3, {T(0)}\nv_lshl_add_u32 {T(2)}, {T(1)}, 2, {T(2)}")
    g(f"v_and_b32 {T(4)}, 7, {T(2)}\nv_lshlrev_b32 {T(4)}, 5, {T(4)}\nv_lshl_add_u32 {T(4)}, {T(2)}, 9, {T(4)}\nv_lshl_add_u32 {T(4)}, {T(3)}, 3, {T(4)}")
    for d in range(8):
        g(f"v_xor_b32 {v('VA',d)}, {d*32}, {T(4)}\nv_add_u32 {v('VA',d)}, {s('LB')}, {v('VA',d)}")
    for t8 in range(8):
        m=(3<<(2*t8))*0x00010001
        g(f"s_mov_b32 {s('MASK',1,2*t8)}, {m:#x}\ns_mov_b32 {s('MASK',1,2*t8+1)}, {m:#x}")
    g(f"v_mov_b32 {v('M')}, {f2u(-1e30):#x}\nv_mov_b32 {v('L')}, 0")
    for i in range(8): g(f"v_mov_b32 {v('O',i)}, 0")

def dma_list(slot, kv, pol):
    sr=s('SRDK',4) if kv==0 else s('SRDV',4)
    out=[]
    for t in range(8):
        pre=""
        if t%4==0: pre=f"s_add_u32 m0, {s('LB')}, {slot*SLOT+(t//4)*4096}\ns_nop 0\n"
        out.append(pre+f"buffer_load_dwordx4 {v('D',t%4)}, {sr}, {s('OFF') if t<4 else s('OFF4')} offen offset:{(t%4)*1024} {pol} lds")
    return out
def set_off_static(g, unit):
    if g.cfg.get('rot') or g.cfg.get('rotb'):
        NS=g.cfg['NS']
        g(f"s_add_u32 {s('OFF')}, {s('T7')}, {unit*4*8192}\ns_sub_u32 {s('OFF4')}, {s('OFF')}, {NS*32768}\ns_cmp_ge_u32 {s('OFF')}, {NS*32768}\ns_cselect_b32 {s('OFF')}, {s('OFF4')}, {s('OFF')}")
        g(f"s_add_u32 {s('OFF')}, {s('OFF')}, {s('WBASE')}\ns_add_u32 {s('OFF4')}, {s('OFF')}, 4096")
        return
    g(f"s_add_u32 {s('OFF')}, {s('WBASE')}, {unit*4*8192}\ns_add_u32 {s('OFF4')}, {s('OFF')}, 4096")
def read_k(g, slot, dst):
    for st in range(8):
        g(f"ds_read_b128 {v(dst,4*st,4)}, {v('KA',st&3)} offset:{slot*SLOT+(st>>2)*256}")
def qk_list(src, sidx):
    return [f"v_mfma_f32_16x16x32_bf16 {v('SS',4*sidx,4)}, {v(src,4*st,4)}, {v('Q',4*st,4)}, {'0' if st==0 else v('SS',4*sidx,4)}" for st in range(8)]
def interleave(g,a,b):
    for i in range(max(len(a),len(b))):
        if i<len(a): g(a[i])
        if i<len(b): g(b[i])
def xlane(g, reg, op, t0, t1):
    for sw in ("v_permlane16_swap_b32","v_permlane32_swap_b32"):
        g(f"v_mov_b32 {t0}, {reg}\nv_mov_b32 {t1}, {reg}\ns_nop 1\n{sw} {t0}, {t1}\ns_nop 1\n{op} {reg}, {t0}, {t1}")
def sm_round(g, t, first):
    r=[v('SS',4*t+i) for i in range(4)]
    for i in (0,2):
        tt=T(6+i//2)
        g(f"v_cvt_pk_bf16_f32 {tt}, {r[i]}, {r[i+1]}\nv_lshlrev_b32 {r[i]}, 16, {tt}\nv_and_b32 {r[i+1]}, 0xffff0000, {tt}")
    if first: g(f"v_max3_f32 {v('TM')}, {r[0]}, {r[1]}, {r[2]}\nv_max_f32 {v('TM')}, {v('TM')}, {r[3]}")
    else: g(f"v_max3_f32 {v('TM')}, {v('TM')}, {r[0]}, {r[1]}\nv_max3_f32 {v('TM')}, {v('TM')}, {r[2]}, {r[3]}")
def sm_stats(g):
    xlane(g,v('TM'),"v_max_f32",T(1),T(2))
    g(f"v_mul_f32 {T(0)}, {s('CS')}, {v('TM')}\nv_max_f32 {T(0)}, {T(0)}, {v('M')}")
    g(f"v_sub_f32 {T(1)}, {v('M')}, {T(0)}\nv_exp_f32 {T(1)}, {T(1)}\nv_mov_b32 {v('M')}, {T(0)}")
    g(f"v_mul_f32 {v('L')}, {v('L')}, {T(1)}")
    for i in range(8): g(f"v_mul_f32 {v('O',i)}, {v('O',i)}, {T(1)}")
def sm_p(g, t):
    r=[v('SS',4*t+i) for i in range(4)]
    for x in r: g(f"v_fma_f32 {x}, {x}, {s('CS')}, -{v('M')}")
    for x in r: g(f"v_exp_f32 {x}, {x}")
    g(f"s_nop 0\nv_add_f32 {T(4)}, {r[0]}, {r[1]}\nv_add_f32 {T(5)}, {r[2]}, {r[3]}\nv_cvt_pk_bf16_f32 {r[0]}, {r[0]}, {r[1]}\nv_cvt_pk_bf16_f32 {r[1]}, {r[2]}, {r[3]}")
    g(f"v_add_f32 {T(4)}, {T(4)}, {T(5)}\nv_add_f32 {v('L')}, {v('L')}, {T(4)}")
def read_v(g, slot):
    for db in range(16):
        g(f"ds_read_b64_tr_b16 {v('VB',2*db,2)}, {v('VA',db&7)} offset:{slot*SLOT+(db>>3)*256}")
def mask_p(g, sidx):
    for t8 in range(8):
        for r in range(2):
            g(f"v_cndmask_b32 {v('A',2*t8+r)}, 0, {v('SS',4*sidx+r)}, {s('MASK',2,2*t8)}")
def pv_list():
    return [f"v_mfma_f32_16x16x16_bf16 {v('O',4*h,4)}, {v('VB',2*(8*h+t8),2)}, {v('A',2*t8,2)}, {v('O',4*h,4)}" for t8 in range(8) for h in range(2)]

def stream_waves(g, fused_q):
    cfg=g.cfg; NS=cfg['NS']; B=cfg['B']; pol=cfg.get('pol','nt'); Dm=cfg.get('D',1); D=cfg.get('Dh',Dm)
    cur=[D]
    fold=cfg.get('fold',0)
    NSB=NS if fold else NS-2
    assert NSB%B==0
    g.q=[]
    kfirst=cfg.get('kfirst',0)
    if fused_q and not kfirst: issue_wq_dma(g)
    stream_setup1(g)
    seq=[]
    for b in range(NSB//B):
        for kv in (0,1):
            for i in range(B): seq.append((kv,b*B+i,i,B))
    if not fold:
        for n in (NSB,NSB+1):
            for kv in (0,1): seq.append((kv,n,0,1))
    def pace():
        n=8*(cur[0]-1)
        g(f"s_waitcnt vmcnt({n})")
        keep=[]; acc=0
        for x in reversed(g.q):
            if acc>=n: break
            keep.append(x); acc+=x[1]
        g.q=list(reversed(keep))
    def landed(tag): return all(t!=tag for t,_ in g.q)
    def issue(i, paced=True):
        if paced: pace()
        set_off_static(g,seq[i][1]); g.vm_issue(('t',i),8)
        return dma_list(i%4,seq[i][0],pol)
    for i in range(D):
        for x in issue(i,False): g(x)
    if fused_q and kfirst: issue_wq_dma(g)
    stream_setup2(g)
    if fused_q: g.vm_wait('wq')
    g("s_barrier")
    for i in range(D,4):
        for x in issue(i): g(x)
    get_tag(g)
    PD=min(cfg.get('predrain',2),B)
    bufs=['KB','KB2','KB3']
    for i in range(PD):
        if not landed(('t',i)): g.vm_wait(('t',i))
        read_k(g,i%4,bufs[i]); g("s_waitcnt lgkmcnt(0)")
        for x in issue(i+4): g(x)
    g.c("wait for q in LDS")
    lp=g.lab("Lq")
    g(f"v_mov_b32 {T(0)}, {L_QF}\ns_mov_b32 {s('SPIN')}, 0")
    g(f"{lp}:\nds_read_b32 {T(1)}, {T(0)}\ns_waitcnt lgkmcnt(0)\nv_readfirstlane_b32 {s('T0')}, {T(1)}")
    g(f"s_add_u32 {s('SPIN')}, {s('SPIN')}, 1\ns_cmp_gt_u32 {s('SPIN')}, {SPIN_MAX*8}\ns_cbranch_scc1 {lp}_x")
    g(f"s_cmp_eq_u32 {s('T0')}, 0\ns_cbranch_scc0 {lp}_x\ns_sleep 1\ns_branch {lp}\n{lp}_x:")
    g.stamp(1)
    cur[0]=Dm
    L=v('LANE')
    g(f"v_and_b32 {T(0)}, 1, {L}\nv_lshlrev_b32 {T(0)}, 9, {T(0)}\nv_lshrrev_b32 {T(1)}, 4, {L}\nv_lshl_add_u32 {T(0)}, {T(1)}, 4, {T(0)}\nv_add_u32 {T(0)}, {L_Q}, {T(0)}")
    for st in range(8): g(f"ds_read_b128 {v('Q',4*st,4)}, {T(0)} offset:{st*64}")
    g("s_waitcnt lgkmcnt(0)")
    for i in range(PD):
        for x in qk_list(bufs[i],i): g(x)
    assert PD<B
    g("s_nop 7")
    for i in range(PD-1): sm_round(g,i,i==0)
    PD_done=[PD-1]
    def do_tile(kv, slot, ib, bb, dlist, pacefn):
        if kv==0:
            read_k(g,slot,'KB')
            if ib>0 and ib>PD_done[0]: sm_round(g,ib-1,ib-1==0)
            g("s_waitcnt lgkmcnt(0)")
            if dlist: pacefn()
            for x in dlist: g(x)
            for x in qk_list('KB',ib): g(x)
            if ib==bb-1:
                g("s_nop 7")
                sm_round(g,ib,ib==0); sm_stats(g)
        else:
            read_v(g,slot); sm_p(g,ib); mask_p(g,ib); g("s_waitcnt lgkmcnt(0)")
            if dlist: pacefn()
            for x in dlist: g(x)
            for x in pv_list(): g(x)
    for i in range(PD,len(seq)-4):
        kv,u,ib,bb=seq[i]
        if not landed(('t',i)): g.vm_wait(('t',i))
        set_off_static(g,seq[i+4][1])
        def pf(i=i):
            pace(); g.vm_issue(('t',i+4),8)
        do_tile(kv,i%4,ib,bb,dma_list(i%4,seq[i+4][0],pol),pf)
        if kv==1: PD_done[0]=-1
    g.stamp(2)
    g.c("pool loop")
    g(f"s_mov_b32 {s('TKI')}, 0\ns_lshl_b32 {s('MBX')}, {s('WAVE')}, 5\ns_add_u32 {s('MBX')}, {s('MBX')}, {L_TK}")
    g(f"s_mov_b32 {s('NUNIT')}, {NS}")
    kn=g.kn
    DP=cfg.get('DP',Dm)
    pw=lambda: g(f"s_waitcnt vmcnt({8*(DP-1)})")
    def fetch_ticket(endlab):
        lp=g.lab("Ltk")
        g(f"s_and_b32 {s('T0')}, {s('TKI')}, 7\ns_lshl_b32 {s('T0')}, {s('T0')}, 2\ns_add_u32 {s('T0')}, {s('T0')}, {s('MBX')}\nv_mov_b32 {T(6)}, {s('T0')}")
        g(f"s_add_u32 {s('TKI')}, {s('TKI')}, 1\ns_mov_b32 {s('SPIN')}, 0")
        g(f"{lp}:\nds_read_b32 {T(7)}, {T(6)}\ns_waitcnt lgkmcnt(0)\nv_readfirstlane_b32 {s('T0')}, {T(7)}")
        g(f"s_add_u32 {s('SPIN')}, {s('SPIN')}, 1\ns_cmp_gt_u32 {s('SPIN')}, {SPIN_MAX*8}\ns_cbranch_scc1 {endlab}")
        g(f"s_lshr_b32 {s('T1')}, {s('T0')}, 12\ns_cmp_eq_u32 {s('T1')}, {s('TKI')}\ns_cbranch_scc0 {lp}")
        g(f"s_lshl_b32 {s('T1')}, {s('WAVE')}, 2\ns_add_u32 {s('T1')}, {s('T1')}, {L_REQ}\nv_mov_b32 {T(6)}, {s('T1')}\nv_mov_b32 {T(7)}, {s('TKI')}\nds_write_b32 {T(6)}, {T(7)}")
        g(f"s_and_b32 {s('T0')}, {s('T0')}, 0xfff\ns_cmp_eq_u32 {s('T0')}, {END_TK}\ns_cbranch_scc1 {endlab}")
        assert cfg.get('lay')==2
        g(f"s_and_b32 {s('T1')}, {s('T0')}, 3\ns_lshr_b32 {s('T0')}, {s('T0')}, 2")
        g(f"s_lshl_b32 {s('T1')}, {s('T1')}, 7\ns_add_u32 {s('T0')}, {s('T0')}, {s('T1')}\ns_add_u32 {s('T0')}, {s('T0')}, {NS*4}\ns_lshl_b32 {s('OFF')}, {s('T0')}, 13\ns_add_u32 {s('OFF4')}, {s('OFF')}, 4096")
    nl=len(seq)
    if fold:
        sl=[(nl-4+k)%4 for k in range(4)]
        assert sl==[0,1,2,3]
        ibs=[seq[nl-4+k][2] for k in range(4)]
        fetch_ticket(f"L_tailx0_{kn}")
        do_tile(1,0,ibs[0],B,dma_list(0,0,pol),pw)
        do_tile(1,1,ibs[1],B,dma_list(1,1,pol),pw)
        fetch_ticket(f"L_tailx1_{kn}")
        do_tile(1,2,ibs[2],B,dma_list(2,0,pol),pw)
        do_tile(1,3,ibs[3],B,dma_list(3,1,pol),pw)
    g(f"L_pool0_{kn}:")
    p0=0 if fold else NSB%2
    for par in (p0,1-p0):
        fetch_ticket(f"L_tail{par}_{kn}")
        g("s_waitcnt vmcnt(24)")
        do_tile(0,2*par,0,1,dma_list(2*par,0,pol),pw)
        g("s_waitcnt vmcnt(24)")
        do_tile(1,2*par+1,0,1,dma_list(2*par+1,1,pol),pw)
    g(f"s_branch L_pool0_{kn}")
    if fold:
        g(f"L_tailx0_{kn}:")
        g("s_waitcnt vmcnt(0)")
        for k in range(4): do_tile(1,k,ibs[k],B,[],None)
        g(f"s_branch L_sdone_{kn}")
        g(f"L_tailx1_{kn}:")
        g("s_waitcnt vmcnt(16)")
        do_tile(1,2,ibs[2],B,[],None); do_tile(1,3,ibs[3],B,[],None)
        g("s_waitcnt vmcnt(8)"); do_tile(0,0,0,1,[],None)
        g("s_waitcnt vmcnt(0)"); do_tile(1,1,0,1,[],None)
        g(f"s_branch L_sdone_{kn}")
    for par in (0,1):
        g(f"L_tail{par}_{kn}:")
        g("s_waitcnt vmcnt(24)"); do_tile(0,2*par,0,1,[],None)
        g("s_waitcnt vmcnt(16)"); do_tile(1,2*par+1,0,1,[],None)
        g("s_waitcnt vmcnt(8)");  do_tile(0,2*(1-par),0,1,[],None)
        g("s_waitcnt vmcnt(0)");  do_tile(1,2*(1-par)+1,0,1,[],None)
        if par==0: g(f"s_branch L_sdone_{kn}")
    g(f"L_sdone_{kn}:")
    g.stamp(3)
    g.c("wave partial -> LDS")
    xlane(g,v('L'),"v_add_f32",T(1),T(2))
    L=v('LANE')
    g(f"v_lshlrev_b32 {T(0)}, 4, {L}\nv_add_u32 {T(0)}, {s('LB')}, {T(0)}")
    g(f"v_and_b32 {T(1)}, 1, {L}\nv_lshlrev_b32 {T(1)}, 3, {T(1)}\nv_add_u32 {T(1)}, {s('LB')}, {T(1)}")
    g(f"v_mov_b32 {T(2)}, {v('M')}\nv_mov_b32 {T(3)}, {v('L')}")
    g("s_nop 4")
    g(f"ds_write_b128 {T(0)}, {v('O',0,4)}\nds_write_b128 {T(0)}, {v('O',4,4)} offset:1024\nds_write_b64 {T(1)}, {T(2,2)} offset:2048")
    g("s_waitcnt lgkmcnt(0)\ns_barrier")
    X=V['X0']; KB=V['KB']
    g(f"s_and_b32 {s('T0')}, {s('WAVE')}, 1\ns_lshl_b32 {s('T0')}, {s('T0')}, 10\ns_lshr_b32 {s('T1')}, {s('WAVE')}, 1")
    g(f"v_bfe_u32 {T(0)}, {L}, 1, 2\nv_lshlrev_b32 {T(0)}, 8, {T(0)}\nv_lshrrev_b32 {T(1)}, 3, {L}\nv_lshl_add_u32 {T(0)}, {T(1)}, 5, {T(0)}")
    g(f"v_and_b32 {T(1)}, 1, {L}\nv_lshl_add_u32 {T(0)}, {T(1)}, 3, {T(0)}")
    g(f"s_lshl_b32 {s('T2')}, {s('T1')}, 4\ns_add_u32 {s('T2')}, {s('T2')}, {s('T0')}\nv_add_u32 {T(0)}, {s('T2')}, {T(0)}\nv_add_u32 {T(2)}, 65536, {T(0)}")
    g(f"s_lshl_b32 {s('T2')}, {s('T1')}, 3\nv_mov_b32 {T(1)}, {s('T2')}\nv_add_u32 {T(3)}, 65536, {T(1)}")
    for w in range(4):
        g(f"ds_read_b64 {R(KB+2*w,2)}, {T(0) if w<2 else T(2)} offset:{(w&1)*32768}")
        g(f"ds_read_b64 {R(KB+8+2*w,2)}, {T(1) if w<2 else T(3)} offset:{(w&1)*32768+2048}")
    g(f"v_lshlrev_b32 {T(4)}, 4, {L}")
    g(f"s_mul_i32 {s('T5')}, s2, {PGS}\ns_add_u32 {s('T5')}, {s('T5')}, {WS_PG}\ns_lshl_b32 {s('T1')}, {s('T1')}, 11\ns_add_u32 {s('T1')}, {s('T1')}, {s('T0')}\ns_add_u32 {s('T1')}, {s('T1')}, {s('T5')}")
    g("s_waitcnt lgkmcnt(0)")
    m=[R(KB+8+2*w) for w in range(4)]; l=[R(KB+9+2*w) for w in range(4)]
    mx=R(X); lt=R(X+2)
    g(f"v_max3_f32 {mx}, {m[0]}, {m[1]}, {m[2]}\nv_max_f32 {mx}, {mx}, {m[3]}")
    for w in range(4): g(f"v_sub_f32 {m[w]}, {m[w]}, {mx}")
    for w in range(4): g(f"v_exp_f32 {m[w]}, {m[w]}")
    g(f"v_mov_b32 {R(X+5)}, {s('TAG')}\nv_mov_b32 {R(X+7)}, {s('TAG')}")
    for r in range(2):
        o=R(X+4+2*r)
        g(f"v_mul_f32 {o}, {m[0]}, {R(KB+r)}")
        for w in range(1,4): g(f"v_fma_f32 {o}, {m[w]}, {R(KB+2*w+r)}, {o}")
    g(f"buffer_store_dwordx4 {R(X+4,4)}, {T(4)}, {s('SRDW',4)}, {s('T1')} offen {g.cfg.get('stf','sc1')}")
    l2=g.lab("Lnost")
    g(f"s_and_b32 {s('T0')}, {s('WAVE')}, 1\ns_cmp_lg_u32 {s('T0')}, 0\ns_cbranch_scc1 {l2}")
    g(f"v_mul_f32 {lt}, {m[0]}, {l[0]}")
    for w in range(1,4): g(f"v_fma_f32 {lt}, {m[w]}, {l[w]}, {lt}")
    g(f"v_mov_b32 {R(X+1)}, {s('TAG')}\nv_mov_b32 {R(X+3)}, {s('TAG')}\nv_mov_b32 {T(3)}, 0")
    g(f"s_lshl_b32 {s('T0')}, {s('WAVE')}, 3\ns_add_u32 {s('T5')}, {s('T5')}, {s('T0')}\ns_add_u32 {s('T5')}, {s('T5')}, 4096\ns_mov_b64 {s('EX',2)}, exec\ns_mov_b64 exec, 1")
    g(f"buffer_store_dwordx4 {R(X,4)}, {T(3)}, {s('SRDW',4)}, {s('T5')} offen {g.cfg.get('stf','sc1')}")
    g(f"s_mov_b64 exec, {s('EX',2)}")
    g(f"{l2}:")
    g.stamp(6)

def hop1_gather(g):
    g.c("hop1 gather")
    L=v('LANE'); X=V['X0']; KB=V['KB']; VB=V['CT']
    g(f"v_lshrrev_b32 {T(0)}, 4, {L}\nv_and_b32 {T(1)}, 15, {L}")
    g(f"v_and_b32 {T(3)}, 3, {T(1)}\nv_lshrrev_b32 {T(4)}, 2, {T(1)}")
    g(f"v_lshlrev_b32 {T(3)}, 5, {T(3)}\nv_add_u32 {T(3)}, {T(3)}, {T(4)}\nv_mul_u32_u24 {T(3)}, {PGS}, {T(3)}")
    g(f"v_mov_b32 {T(5)}, {T(3)}\nv_lshl_add_u32 {T(3)}, {T(0)}, 6, {T(3)}")
    g(f"s_lshl_b32 {s('T0')}, {s('BR')}, 5\ns_add_u32 {s('T0')}, {s('T0')}, {s('HKV')}\ns_mul_i32 {s('T0')}, {s('T0')}, {4*PGS}\ns_add_u32 {s('T0')}, {s('T0')}, {WS_PG}")
    g(f"s_lshl_b32 {s('T1')}, {s('C')}, 8\ns_add_u32 {s('T1')}, {s('T1')}, {s('T0')}")
    g(f"s_lshr_b32 {s('T2')}, {s('C')}, 3\ns_lshl_b32 {s('T2')}, {s('T2')}, 4\ns_add_u32 {s('T2')}, {s('T2')}, {s('T0')}\ns_add_u32 {s('T2')}, {s('T2')}, 4096")
    lp=g.lab("Lh1")
    if g.cfg.get('h1delay'): g(f"s_sleep {g.cfg['h1delay']}")
    g(f"s_mov_b32 {s('SPIN')}, 0")
    g(f"{lp}:")
    for n in range(4):
        g(f"buffer_load_dwordx4 {R(KB+4*n,4)}, {T(3)}, {s('SRDW',4)}, {s('T1')} offen offset:{16*n} {g.cfg.get('ldf','sc1')}")
    g(f"buffer_load_dwordx4 {R(KB+16,4)}, {T(5)}, {s('SRDW',4)}, {s('T2')} offen {g.cfg.get('ldf','sc1')}")
    g("s_waitcnt vmcnt(0)")
    g(f"v_xor_b32 {T(6)}, {s('TAG')}, {R(KB+1)}")
    for n in range(1,10):
        g(f"v_xor_b32 {T(7)}, {s('TAG')}, {R(KB+1+2*n)}\nv_or_b32 {T(6)}, {T(6)}, {T(7)}")
    g(f"v_cmp_ne_u32 vcc, 0, {T(6)}\ns_add_u32 {s('SPIN')}, {s('SPIN')}, 1\ns_cmp_gt_u32 {s('SPIN')}, {SPIN_MAX}\ns_cbranch_scc1 {lp}_x")
    g(f"s_cbranch_vccz {lp}_x\ns_sleep {g.cfg.get('h1sleep',2)}\ns_branch {lp}\n{lp}_x:")
    g.stamp(5)
    if g.cfg.get('stamps'): g(f"s_waitcnt lgkmcnt(0)\ns_mov_b32 s{S['ST']+16}, {s('SPIN')}\ns_mov_b32 s{S['ST']+17}, 0")
    M=R(KB+16); Lr=R(KB+18)
    def ror_red(reg,op,t):
        for n in (8,4):
            g(f"s_nop 1\nv_mov_b32_dpp {t}, {reg} row_ror:{n} row_mask:0xf bank_mask:0xf\n{op} {reg}, {reg}, {t}")
    g(f"v_mov_b32 {T(6)}, {M}")
    ror_red(T(6),"v_max_f32",T(7))
    g(f"v_sub_f32 {T(6)}, {M}, {T(6)}\nv_exp_f32 {T(6)}, {T(6)}\ns_nop 0\nv_mul_f32 {T(8)}, {T(6)}, {Lr}")
    ror_red(T(8),"v_add_f32",T(7))
    g(f"v_rcp_f32 {T(8)}, {T(8)}\ns_nop 0\nv_mul_f32 {T(6)}, {T(6)}, {T(8)}")
    for e in range(8): g(f"v_mul_f32 {R(KB+2*e)}, {R(KB+2*e)}, {T(6)}")
    for n in (8,4):
        g("s_nop 1")
        for e in range(8): g(f"v_mov_b32_dpp {R(VB+e)}, {R(KB+2*e)} row_ror:{n} row_mask:0xf bank_mask:0xf")
        for e in range(8): g(f"v_add_f32 {R(KB+2*e)}, {R(KB+2*e)}, {R(VB+e)}")
    for e in range(4): g(f"v_cvt_pk_bf16_f32 {R(X+e)}, {R(KB+4*e)}, {R(KB+4*e+2)}")
    g(f"v_lshlrev_b32 {T(0)}, 4, {L}\nv_add_u32 {T(0)}, {L_Q}, {T(0)}\nds_write_b128 {T(0)}, {R(X,4)}")
    g("s_waitcnt lgkmcnt(0)\ns_barrier")

def hop1_proj(g):
    g.c("hop1 projection")
    L=v('LANE'); X=V['X0']; Q=V['Q']; SS=V['SS']; A0=V['A']
    g(f"v_lshrrev_b32 {T(0)}, 4, {L}\nv_and_b32 {T(1)}, 15, {L}\nv_lshrrev_b32 {T(2)}, 2, {T(1)}\nv_and_b32 {T(3)}, 3, {T(1)}")
    g(f"v_lshl_add_u32 {T(2)}, {T(0)}, 3, {T(2)}\nv_mul_u32_u24 {T(2)}, 896, {T(2)}\nv_lshl_add_u32 {T(2)}, {T(3)}, 3, {T(2)}")
    g(f"s_mul_i32 {s('T0')}, {s('WAVE')}, {7*32}\ns_add_u32 {s('T0')}, {s('T0')}, {AUX}\nv_add_u32 {T(2)}, {s('T0')}, {T(2)}")
    for n in range(7):
        g(f"ds_read_b64_tr_b16 {R(Q+4*n,2)}, {T(2)} offset:{n*32}")
        g(f"ds_read_b64_tr_b16 {R(Q+4*n+2,2)}, {T(2)} offset:{n*32+4*896}")
    g(f"s_mul_i32 {s('T0')}, {s('BR')}, 28\ns_mul_i32 {s('T1')}, {s('WAVE')}, 7\ns_add_u32 {s('T0')}, {s('T0')}, {s('T1')}\ns_lshl_b32 {s('T0')}, {s('T0')}, 7")
    g(f"s_lshl_b32 {s('T1')}, {s('HKV')}, 4\ns_add_u32 {s('T1')}, {s('T1')}, {s('C')}\ns_add_u32 {s('T0')}, {s('T0')}, {s('T1')}\ns_lshl_b32 {s('T0')}, {s('T0')}, 9\ns_add_u32 {s('T0')}, {s('T0')}, {WS_OG}")
    g(f"v_lshrrev_b32 {T(4)}, 3, {T(1)}\nv_lshlrev_b32 {T(4)}, 16, {T(4)}\nv_lshl_add_u32 {T(4)}, {T(3)}, 7, {T(4)}\nv_lshl_add_u32 {T(4)}, {T(0)}, 5, {T(4)}")
    g(f"v_bfe_u32 {T(5)}, {T(1)}, 2, 1\nv_lshl_add_u32 {T(4)}, {T(5)}, 4, {T(4)}")
    for i in range(8): g(f"v_mov_b32 {R(A0+2*i+1)}, {s('TAG')}")
    g(f"s_mov_b32 {s('MASK',1,0)}, 0xf0f0f0f0\ns_mov_b32 {s('MASK',1,1)}, 0xf0f0f0f0\ns_mov_b32 {s('MASK',1,2)}, 0xff00ff00\ns_mov_b32 {s('MASK',1,3)}, 0xff00ff00")
    g(f"v_lshlrev_b32 {T(0)}, 4, {L}\nv_add_u32 {T(0)}, {L_Q}, {T(0)}")
    g("s_waitcnt lgkmcnt(0)\ns_barrier")
    g.stamp(4)
    g(f"ds_read_b128 {R(X,4)}, {T(0)}\ns_waitcnt lgkmcnt(0)")
    for n in range(7):
        g(f"v_mfma_f32_16x16x32_bf16 {R(SS+4*n,4)}, {R(Q+4*n,4)}, {R(X,4)}, 0")
    g("s_nop 1")
    mh=s('MASK',2,0); mc=s('MASK',2,2)
    for pr in range(4):
        n0=2*pr; n1=2*pr+1
        base=A0+4*pr
        if n1<7:
            for e in range(2):
                g(f"v_cndmask_b32 {T(6)}, {R(SS+4*n0+e)}, {R(SS+4*n0+2+e)}, {mh}\nv_cndmask_b32 {T(7)}, {R(SS+4*n1+e)}, {R(SS+4*n1+2+e)}, {mh}\nv_cndmask_b32 {R(base+2*e)}, {T(6)}, {T(7)}, {mc}")
        else:
            g("s_nop 4")
            for e in range(2):
                g(f"v_cndmask_b32 {R(base+2*e)}, {R(SS+4*n0+e)}, {R(SS+4*n0+2+e)}, {mh}")
            g(f"s_mov_b64 {s('EX',2)}, exec\ns_mov_b32 exec_lo, 0x00ff00ff\ns_mov_b32 exec_hi, 0x00ff00ff")
        g(f"buffer_store_dwordx4 {R(base,4)}, {T(4)}, {s('SRDW',4)}, {s('T0')} offen {g.cfg.get('stf','sc1')}")
        g(f"s_add_u32 {s('T0')}, {s('T0')}, 131072")
    g(f"s_mov_b64 exec, {s('EX',2)}")
    g.stamp(5)

def cw_init(g, do_cnt):
    g.c("CW init")
    L=v('LANE')
    g(f"v_lshlrev_b32 {T(0)}, 2, {L}\nv_add_u32 {T(0)}, {L_TK}, {T(0)}\nv_mov_b32 {T(1)}, 0\nds_write_b32 {T(0)}, {T(1)}")
    if do_cnt:
        l=g.lab("Lnc")
        g(f"s_cmp_lg_u32 {s('MEM')}, 0\ns_cbranch_scc1 {l}")
        g(f"s_lshl_b32 {s('T0')}, {s('TEAM')}, 8\ns_add_u32 {s('T0')}, {s('T0')}, {WS_CNT}\nv_mov_b32 {T(2)}, 0")
        g(f"s_mov_b64 {s('EX',2)}, exec\ns_mov_b64 exec, 1")
        g(f"buffer_store_dword {T(1)}, {T(2)}, {s('SRDW',4)}, {s('T0')} offen sc1")
        g(f"s_mov_b64 exec, {s('EX',2)}\n{l}:")

def cw_qproj_v2(g):
    L=v('LANE'); XR=V['Q']
    g.c("x operand loads")
    srd(g,'SRDA','X',4*896)
    g(f"v_and_b32 {T(0)}, 3, {L}\nv_mul_u32_u24 {T(0)}, 896, {T(0)}\nv_lshrrev_b32 {T(1)}, 4, {L}\nv_lshl_add_u32 {T(0)}, {T(1)}, 4, {T(0)}")
    g(f"s_and_b32 {s('T0')}, {s('C')}, 1\ns_mul_i32 {s('T0')}, {s('T0')}, 448")
    for st in range(7):
        g(f"buffer_load_dwordx4 {R(XR+4*st,4)}, {T(0)}, {s('SRDA',4)}, {s('T0')} offen offset:{st*64} {g.cfg.get('xpol','nt')}")
    g("s_waitcnt lgkmcnt(0)\ns_barrier")
    g.stamp(1)
    g(f"v_and_b32 {T(2)}, 15, {L}\nv_lshrrev_b32 {T(3)}, 2, {T(2)}\nv_and_b32 {T(4)}, 3, {T(2)}")
    g(f"v_lshl_add_u32 {T(3)}, {T(1)}, 3, {T(3)}\nv_lshlrev_b32 {T(3)}, 7, {T(3)}\nv_lshl_add_u32 {T(3)}, {T(4)}, 3, {T(3)}\nv_add_u32 {T(3)}, {AUX}, {T(3)}")
    AB=V['KB']
    D=V['O']
    for cb in range(4):
        for st in range(7):
            g(f"ds_read_b64_tr_b16 {R(AB+28*cb+4*st,2)}, {T(3)} offset:{st*4096+cb*32}")
            g(f"ds_read_b64_tr_b16 {R(AB+28*cb+4*st+2,2)}, {T(3)} offset:{st*4096+cb*32+512}")
    g(f"v_lshlrev_b32 {T(5)}, 16, {T(4)}\nv_lshrrev_b32 {T(6)}, 3, {T(2)}\nv_lshl_add_u32 {T(5)}, {T(6)}, 7, {T(5)}\nv_lshl_add_u32 {T(5)}, {T(1)}, 5, {T(5)}\nv_bfe_u32 {T(6)}, {T(2)}, 2, 1\nv_lshl_add_u32 {T(5)}, {T(6)}, 4, {T(5)}")
    g(f"s_lshl_b32 {s('T0')}, {s('BR')}, 5\ns_add_u32 {s('T0')}, {s('T0')}, {s('HKV')}\ns_lshl_b32 {s('T0')}, {s('T0')}, 13\ns_add_u32 {s('T0')}, {s('T0')}, {WS_QG}")
    g(f"s_and_b32 {s('T1')}, {s('C')}, 1\ns_lshl_b32 {s('T1')}, {s('T1')}, 12\ns_add_u32 {s('T0')}, {s('T0')}, {s('T1')}\ns_lshr_b32 {s('T1')}, {s('C')}, 1\ns_lshl_b32 {s('T1')}, {s('T1')}, 9\ns_add_u32 {s('T0')}, {s('T0')}, {s('T1')}")
    g(f"s_mov_b32 {s('MASK',1,0)}, 0xf0f0f0f0\ns_mov_b32 {s('MASK',1,1)}, 0xf0f0f0f0\ns_mov_b32 {s('MASK',1,2)}, 0xff00ff00\ns_mov_b32 {s('MASK',1,3)}, 0xff00ff00")
    get_tag(g)
    g(f"v_mov_b32 {T(9)}, {s('TAG')}\nv_mov_b32 {T(11)}, {s('TAG')}\nv_mov_b32 {T(13)}, {s('TAG')}\nv_mov_b32 {T(15)}, {s('TAG')}")
    g("s_waitcnt vmcnt(0) lgkmcnt(0)")
    g.stamp(9)
    for st in range(7):
        for cb in range(4):
            g(f"v_mfma_f32_16x16x32_bf16 {R(D+4*cb,4)}, {R(AB+28*cb+4*st,4)}, {R(XR+4*st,4)}, {'0' if st==0 else R(D+4*cb,4)}")
    g("s_nop 7")
    mh=s('MASK',2,0); mc=s('MASK',2,2)
    for pr in range(2):
        n0=2*pr; n1=2*pr+1; base=V['T']+8+4*pr
        for e in range(2):
            g(f"v_cndmask_b32 {T(6)}, {R(D+4*n0+e)}, {R(D+4*n0+2+e)}, {mh}\nv_cndmask_b32 {T(7)}, {R(D+4*n1+e)}, {R(D+4*n1+2+e)}, {mh}\nv_cndmask_b32 {R(base+2*e)}, {T(6)}, {T(7)}, {mc}")
        g(f"buffer_store_dwordx4 {R(base,4)}, {T(5)}, {s('SRDW',4)}, {s('T0')} offen offset:{pr*256} sc1")
    g.stamp(2)

def cw_qrecv_v2(g):
    g.c("receive q")
    L=v('LANE'); KB=V['KB']
    g(f"v_lshlrev_b32 {T(0)}, 6, {L}")
    g(f"s_lshl_b32 {s('T0')}, {s('TEAM')}, 13\ns_add_u32 {s('T0')}, {s('T0')}, {WS_QG}\ns_add_u32 {s('T1')}, {s('T0')}, 4096")
    lp=g.lab("Lqr")
    if g.cfg.get('qdelay'): g(f"s_sleep {g.cfg['qdelay']}")
    g(f"s_mov_b32 {s('SPIN')}, 0\n{lp}:")
    for k in range(2):
        for n in range(4):
            g(f"buffer_load_dwordx4 {R(KB+16*k+4*n,4)}, {T(0)}, {s('SRDW',4)}, {s('T0') if k==0 else s('T1')} offen offset:{16*n} sc1")
    g("s_waitcnt vmcnt(0)")
    g(f"v_xor_b32 {T(1)}, {s('TAG')}, {R(KB+1)}")
    for n in range(1,16): g(f"v_xor_b32 {T(2)}, {s('TAG')}, {R(KB+1+2*n)}\nv_or_b32 {T(1)}, {T(1)}, {T(2)}")
    g(f"v_cmp_ne_u32 vcc, 0, {T(1)}\ns_add_u32 {s('SPIN')}, {s('SPIN')}, 1\ns_cmp_gt_u32 {s('SPIN')}, {SPIN_MAX}\ns_cbranch_scc1 {lp}_x")
    g(f"s_cbranch_vccz {lp}_x\ns_sleep {g.cfg.get('qsleep',2)}\ns_branch {lp}\n{lp}_x:")
    for e in range(8): g(f"v_add_f32 {R(KB+2*e)}, {R(KB+2*e)}, {R(KB+16+2*e)}")
    for e in range(4): g(f"v_cvt_pk_bf16_f32 {T(4+e)}, {R(KB+4*e)}, {R(KB+4*e+2)}")
    g(f"v_lshlrev_b32 {T(0)}, 4, {L}\nv_add_u32 {T(0)}, {L_Q}, {T(0)}\nds_write_b128 {T(0)}, {T(4,4)}")
    g("s_waitcnt lgkmcnt(0)")
    g(f"v_mov_b32 {T(0)}, {L_QF}\nv_mov_b32 {T(1)}, 1\nds_write_b32 {T(0)}, {T(1)}")
    g.stamp(3)

def issue_wq_dma_v1(g):
    g.c("wq slice DMA (7 x 1KB per wave): 448 rows x 64 B")
    srd(g,'SRDA','WQ',448*8192)
    L=v('LANE')
    g(f"v_lshrrev_b32 {T(0)}, 2, {L}\nv_lshlrev_b32 {T(0)}, 13, {T(0)}")
    g(f"v_and_b32 {T(1)}, 3, {L}\nv_lshl_add_u32 {T(0)}, {T(1)}, 4, {T(0)}")
    g(f"s_lshl_b32 {s('T0')}, {s('HKV')}, 10\ns_lshl_b32 {s('T1')}, {s('C')}, 6\ns_add_u32 {s('T0')}, {s('T0')}, {s('T1')}")
    g(f"s_mul_i32 {s('T1')}, {s('WAVE')}, {7*131072}\ns_add_u32 {s('T0')}, {s('T0')}, {s('T1')}")
    g(f"s_mul_i32 {s('T1')}, {s('WAVE')}, {7*1024}\ns_add_u32 {s('T1')}, {s('T1')}, {AUX}")
    for n in range(7):
        g(f"s_mov_b32 m0, {s('T1')}\ns_add_u32 {s('T1')}, {s('T1')}, 1024")
        g(f"buffer_load_dwordx4 {T(0)}, {s('SRDA',4)}, {s('T0')} offen {g.cfg.get('wqpol','nt')} lds")
        g(f"s_add_u32 {s('T0')}, {s('T0')}, 131072")
    g.vm_issue('wq',7)

def cw_qproj_v1(g):
    L=v('LANE'); XR=V['Q']
    g.c("x operand loads")
    srd(g,'SRDA','X',4*896)
    g(f"v_and_b32 {T(0)}, 3, {L}\nv_mul_u32_u24 {T(0)}, 896, {T(0)}\nv_lshrrev_b32 {T(1)}, 4, {L}\nv_lshl_add_u32 {T(0)}, {T(1)}, 4, {T(0)}")
    for st in range(14):
        g(f"buffer_load_dwordx4 {R(XR+4*st,4)}, {T(0)}, {s('SRDA',4)}, 0 offen offset:{st*64} {g.cfg.get('xpol','nt')}")
    g("s_waitcnt lgkmcnt(0)\ns_barrier")
    g.stamp(1)
    g(f"v_and_b32 {T(2)}, 15, {L}\nv_lshrrev_b32 {T(3)}, 2, {T(2)}\nv_and_b32 {T(4)}, 3, {T(2)}")
    g(f"v_lshl_add_u32 {T(3)}, {T(1)}, 3, {T(3)}\nv_lshlrev_b32 {T(3)}, 6, {T(3)}\nv_lshl_add_u32 {T(3)}, {T(4)}, 3, {T(3)}\nv_add_u32 {T(3)}, {AUX}, {T(3)}")
    AB=V['QA']
    D=V['O']
    for cb in range(2):
        for st in range(14):
            g(f"ds_read_b64_tr_b16 {R(AB+56*cb+4*st,2)}, {T(3)} offset:{st*2048+cb*32}")
            g(f"ds_read_b64_tr_b16 {R(AB+56*cb+4*st+2,2)}, {T(3)} offset:{st*2048+cb*32+256}")
    g(f"v_lshlrev_b32 {T(5)}, 16, {T(4)}\nv_bfe_u32 {T(6)}, {T(2)}, 2, 1\nv_lshl_add_u32 {T(5)}, {T(6)}, 6, {T(5)}\nv_lshl_add_u32 {T(5)}, {T(1)}, 4, {T(5)}")
    g(f"s_lshl_b32 {s('T0')}, {s('BR')}, 5\ns_add_u32 {s('T0')}, {s('T0')}, {s('HKV')}\ns_lshl_b32 {s('T0')}, {s('T0')}, 13\ns_add_u32 {s('T0')}, {s('T0')}, {WS_QG}")
    g(f"s_lshl_b32 {s('T1')}, {s('C')}, 7\ns_add_u32 {s('T0')}, {s('T0')}, {s('T1')}")
    g(f"s_mov_b32 {s('MASK',1,0)}, 0xf0f0f0f0\ns_mov_b32 {s('MASK',1,1)}, 0xf0f0f0f0")
    get_tag(g)
    g(f"v_mov_b32 {T(9)}, {s('TAG')}\nv_mov_b32 {T(11)}, {s('TAG')}")
    g("s_waitcnt vmcnt(0) lgkmcnt(0)")
    g.stamp(9)
    for st in range(14):
        for cb in range(2):
            g(f"v_mfma_f32_16x16x32_bf16 {R(D+4*cb,4)}, {R(AB+56*cb+4*st,4)}, {R(XR+4*st,4)}, {'0' if st==0 else R(D+4*cb,4)}")
    g("s_nop 7")
    mh=s('MASK',2,0)
    for cb in range(2):
        g(f"v_cvt_pk_bf16_f32 {T(12+2*cb)}, {R(D+4*cb)}, {R(D+4*cb+1)}\nv_cvt_pk_bf16_f32 {T(13+2*cb)}, {R(D+4*cb+2)}, {R(D+4*cb+3)}")
    g(f"v_cndmask_b32 {T(8)}, {T(12)}, {T(14)}, {mh}\nv_cndmask_b32 {T(10)}, {T(13)}, {T(15)}, {mh}")
    g(f"s_mov_b64 {s('EX',2)}, exec\ns_mov_b32 exec_lo, 0x00ff00ff\ns_mov_b32 exec_hi, 0x00ff00ff")
    g(f"buffer_store_dwordx4 {T(8,4)}, {T(5)}, {s('SRDW',4)}, {s('T0')} offen sc1")
    g(f"s_mov_b64 exec, {s('EX',2)}")
    g.stamp(2)

def cw_qrecv_v1(g):
    g.c("receive q")
    L=v('LANE'); KB=V['KB']
    g(f"v_lshlrev_b32 {T(0)}, 5, {L}")
    g(f"s_lshl_b32 {s('T0')}, {s('TEAM')}, 13\ns_add_u32 {s('T0')}, {s('T0')}, {WS_QG}")
    lp=g.lab("Lqr")
    if g.cfg.get('qdelay'): g(f"s_sleep {g.cfg['qdelay']}")
    g(f"s_mov_b32 {s('SPIN')}, 0\n{lp}:")
    g(f"buffer_load_dwordx4 {R(KB,4)}, {T(0)}, {s('SRDW',4)}, {s('T0')} offen sc1")
    g(f"buffer_load_dwordx4 {R(KB+4,4)}, {T(0)}, {s('SRDW',4)}, {s('T0')} offen offset:16 sc1")
    g("s_waitcnt vmcnt(0)")
    g(f"v_xor_b32 {T(1)}, {s('TAG')}, {R(KB+1)}")
    for n in range(1,4): g(f"v_xor_b32 {T(2)}, {s('TAG')}, {R(KB+1+2*n)}\nv_or_b32 {T(1)}, {T(1)}, {T(2)}")
    g(f"v_cmp_ne_u32 vcc, 0, {T(1)}\ns_add_u32 {s('SPIN')}, {s('SPIN')}, 1\ns_cmp_gt_u32 {s('SPIN')}, {SPIN_MAX}\ns_cbranch_scc1 {lp}_x")
    g(f"s_cbranch_vccz {lp}_x\ns_sleep {g.cfg.get('qsleep',2)}\ns_branch {lp}\n{lp}_x:")
    g(f"v_mov_b32 {T(4)}, {R(KB)}\nv_mov_b32 {T(5)}, {R(KB+2)}\nv_mov_b32 {T(6)}, {R(KB+4)}\nv_mov_b32 {T(7)}, {R(KB+6)}")
    g(f"v_lshlrev_b32 {T(0)}, 4, {L}\nv_add_u32 {T(0)}, {L_Q}, {T(0)}\nds_write_b128 {T(0)}, {T(4,4)}")
    g("s_waitcnt lgkmcnt(0)")
    g(f"v_mov_b32 {T(0)}, {L_QF}\nv_mov_b32 {T(1)}, 1\nds_write_b32 {T(0)}, {T(1)}")
    g.stamp(3)

def issue_wq_dma(g): (issue_wq_dma_v2 if g.cfg.get('qv')==2 else issue_wq_dma_v1)(g)
def cw_qproj(g): (cw_qproj_v2 if g.cfg.get('qv')==2 else cw_qproj_v1)(g)
def cw_qrecv(g): (cw_qrecv_v2 if g.cfg.get('qv')==2 else cw_qrecv_v1)(g)

def cw_wo_dma(g):
    g.c("wo slice DMA -> AUX")
    L=v('LANE')
    srd(g,'SRDA','WO',4096*896)
    g(f"v_lshlrev_b32 {T(0)}, 4, {L}")
    g(f"s_lshl_b32 {s('T0')}, {s('HKV')}, 9\ns_lshl_b32 {s('T1')}, {s('C')}, 5\ns_add_u32 {s('T0')}, {s('T0')}, {s('T1')}\ns_mul_i32 {s('T0')}, {s('T0')}, 896")
    g(f"s_mov_b32 {s('T1')}, {AUX}")
    for n in range(28):
        g(f"s_mov_b32 m0, {s('T1')}\ns_add_u32 {s('T1')}, {s('T1')}, 1024")
        g(f"buffer_load_dwordx4 {T(0)}, {s('SRDA',4)}, {s('T0')} offen nt lds")
        g(f"s_add_u32 {s('T0')}, {s('T0')}, 1024")

def cw_pretouch(g):
    g.c("pretouch")
    if g.cfg.get('ptstag'):
        l=g.lab("Lstag")
        g(f"s_and_b32 {s('T0')}, s2, 31\n{l}:\ns_sleep {g.cfg['ptstag']}\ns_sub_u32 {s('T0')}, {s('T0')}, 1\ns_cmp_ge_i32 {s('T0')}, 0\ns_cbranch_scc1 {l}")
    L=v('LANE'); mode=g.cfg.get('pretouch'); pp=g.cfg.get('ptpol','')
    if mode==3:
        g(f"s_mul_i32 {s('T5')}, s2, {PGS}\ns_add_u32 {s('T5')}, {s('T5')}, {WS_PG}")
        g(f"s_add_u32 s46, {s('WS')}, {s('T5')}\ns_addc_u32 s47, {s('WS',1,1)}, 0")
        for i in range(33): g(f"s_load_dword {s('T6')}, s[46:47], {i*128}")
        g(f"s_mul_i32 {s('T0')}, {s('BR')}, 28\ns_lshl_b32 {s('T0')}, {s('T0')}, 7")
        g(f"s_lshl_b32 {s('T1')}, {s('HKV')}, 4\ns_add_u32 {s('T1')}, {s('T1')}, {s('C')}\ns_add_u32 {s('T0')}, {s('T0')}, {s('T1')}\ns_lshl_b32 {s('T0')}, {s('T0')}, 9\ns_add_u32 {s('T0')}, {s('T0')}, {WS_OG}")
        for half in range(2):
            g(f"s_add_u32 s46, {s('WS')}, {s('T0')}\ns_addc_u32 s47, {s('WS',1,1)}, 0")
            for n in range(14):
                for q in range(4): g(f"s_load_dword {s('T6')}, s[46:47], {n*65536+q*128}")
            g(f"s_add_u32 {s('T0')}, {s('T0')}, {14*65536}")
        g("s_waitcnt lgkmcnt(0)")
        return
    g(f"s_not_b32 {s('T0')}, {s('TAG')}")
    for i in range(4): g(f"v_mov_b32 {T(4+i)}, {s('T0')}")
    g(f"v_lshlrev_b32 {T(0)}, 4, {L}")
    g(f"s_mul_i32 {s('T5')}, s2, {PGS}\ns_add_u32 {s('T5')}, {s('T5')}, {WS_PG}")
    KB=V['KB']
    def op(i,addr,so,off=0):
        if mode==1: g(f"buffer_store_dwordx4 {T(4,4)}, {addr}, {s('SRDW',4)}, {so} offen offset:{off} sc1")
        else: g(f"buffer_load_dwordx4 {R(KB+4*i,4)}, {addr}, {s('SRDW',4)}, {so} offen offset:{off} {pp}")
    for i in range(4): op(i,T(0),s('T5'),i*1024)
    g(f"s_add_u32 {s('T5')}, {s('T5')}, 4096\ns_mov_b64 exec, 3")
    op(4,T(0),s('T5'))
    g("s_mov_b64 exec, -1")
    g(f"v_lshrrev_b32 {T(1)}, 5, {L}\nv_lshlrev_b32 {T(1)}, 16, {T(1)}\nv_and_b32 {T(2)}, 31, {L}\nv_lshl_add_u32 {T(1)}, {T(2)}, 4, {T(1)}")
    g(f"s_mul_i32 {s('T0')}, {s('BR')}, 28\ns_lshl_b32 {s('T0')}, {s('T0')}, 7")
    g(f"s_lshl_b32 {s('T1')}, {s('HKV')}, 4\ns_add_u32 {s('T1')}, {s('T1')}, {s('C')}\ns_add_u32 {s('T0')}, {s('T0')}, {s('T1')}\ns_lshl_b32 {s('T0')}, {s('T0')}, 9\ns_add_u32 {s('T0')}, {s('T0')}, {WS_OG}")
    for i in range(14):
        op(5+i,T(1),s('T0')); g(f"s_add_u32 {s('T0')}, {s('T0')}, 131072")

def cw_tickets(g):
    g.c("ticket service")
    NS=g.cfg['NS']; POOL=(32-NS)*16; kn=g.kn; L=v('LANE')
    g(f"v_mov_b32 {T(0)}, 0")
    g(f"s_lshl_b32 {s('T0')}, {s('TEAM')}, 8\ns_add_u32 {s('T0')}, {s('T0')}, {WS_CNT}\nv_mov_b32 {T(1)}, {s('T0')}")
    g(f"v_lshlrev_b32 {T(2)}, 2, {L}\nv_add_u32 {T(2)}, {L_REQ}, {T(2)}")
    g(f"v_lshlrev_b32 {T(3)}, 5, {L}\nv_add_u32 {T(3)}, {L_TK}, {T(3)}")
    g(f"s_mov_b64 {s('ACT',2)}, 0xf\ns_mov_b32 {s('SPIN')}, 0")
    g(f"L_twl_{kn}:")
    g(f"s_mov_b64 exec, {s('ACT',2)}")
    g(f"s_add_u32 {s('SPIN')}, {s('SPIN')}, 1\ns_cmp_gt_u32 {s('SPIN')}, {SPIN_MAX*4}\ns_cbranch_scc1 L_twe_{kn}")
    g(f"ds_read_b32 {T(4)}, {T(2)}\ns_waitcnt lgkmcnt(0)\nv_add_u32 {T(4)}, 1, {T(4)}")
    g(f"v_cmp_lt_u32 vcc, {T(0)}, {T(4)}\ns_nop 1\ns_and_b64 exec, exec, vcc\ns_cbranch_execz L_tws_{kn}")
    g(f"v_mov_b32 {T(5)}, 1\nbuffer_atomic_add {T(5)}, {T(1)}, {s('SRDW',4)}, 0 offen sc0 sc1\ns_waitcnt vmcnt(0)")
    g(f"v_cmp_gt_u32 vcc, {POOL}, {T(5)}\nv_mov_b32 {T(6)}, {END_TK}\ns_nop 1\nv_cndmask_b32 {T(6)}, {T(6)}, {T(5)}, vcc")
    g(f"v_and_b32 {T(7)}, 7, {T(0)}\nv_lshl_add_u32 {T(7)}, {T(7)}, 2, {T(3)}\nv_add_u32 {T(0)}, 1, {T(0)}\nv_lshl_or_b32 {T(6)}, {T(0)}, 12, {T(6)}")
    g(f"ds_write_b32 {T(7)}, {T(6)}")
    g(f"v_cmp_le_u32 vcc, {POOL}, {T(5)}\ns_nop 1\ns_andn2_b64 {s('ACT',2)}, {s('ACT',2)}, vcc")
    g(f"s_cmp_eq_u64 {s('ACT',2)}, 0\ns_cbranch_scc1 L_twe_{kn}\ns_branch L_twl_{kn}")
    g(f"L_tws_{kn}:\ns_sleep 2\ns_branch L_twl_{kn}")
    g(f"L_twe_{kn}:\ns_mov_b64 exec, -1\ns_waitcnt vmcnt(0) lgkmcnt(0)")

def hop2(g):
    g.c("hop2")
    L=v('LANE'); KB=V['KB']; kn=g.kn
    g(f"s_cmp_ge_u32 {s('WL')}, 112\ns_cbranch_scc1 L_fin_{kn}")
    g(f"v_lshrrev_b32 {T(0)}, 3, {L}\nv_lshlrev_b32 {T(0)}, 9, {T(0)}\nv_and_b32 {T(1)}, 7, {L}\nv_lshl_add_u32 {T(0)}, {T(1)}, 4, {T(0)}")
    g(f"s_mul_i32 {s('T0')}, {s('BR')}, 28\ns_lshr_b32 {s('T1')}, {s('WL')}, 2\ns_add_u32 {s('T0')}, {s('T0')}, {s('T1')}\ns_lshl_b32 {s('T0')}, {s('T0')}, 16")
    g(f"s_and_b32 {s('T2')}, {s('WL')}, 3\ns_lshl_b32 {s('T2')}, {s('T2')}, 7\ns_add_u32 {s('T0')}, {s('T0')}, {s('T2')}\ns_add_u32 {s('T0')}, {s('T0')}, {WS_OG}")
    lp=g.lab("Lh2")
    if g.cfg.get('h2delay'): g(f"s_sleep {g.cfg['h2delay']}")
    g(f"s_mov_b32 {s('SPIN')}, 0\n{lp}:\ns_mov_b32 {s('T5')}, {s('T0')}")
    for i in range(16):
        g(f"buffer_load_dwordx4 {R(KB+4*i,4)}, {T(0)}, {s('SRDW',4)}, {s('T5')} offen sc1\ns_add_u32 {s('T5')}, {s('T5')}, 4096")
    g("s_waitcnt vmcnt(0)")
    g(f"v_xor_b32 {T(2)}, {s('TAG')}, {R(KB+1)}")
    for n in range(1,32): g(f"v_xor_b32 {T(3)}, {s('TAG')}, {R(KB+1+2*n)}\nv_or_b32 {T(2)}, {T(2)}, {T(3)}")
    g(f"v_cmp_ne_u32 vcc, 0, {T(2)}\ns_add_u32 {s('SPIN')}, {s('SPIN')}, 1\ns_cmp_gt_u32 {s('SPIN')}, {SPIN_MAX}\ns_cbranch_scc1 {lp}_x")
    g(f"s_cbranch_vccz {lp}_x\ns_sleep 2\ns_branch {lp}\n{lp}_x:")
    g.stamp(6)
    if g.cfg.get('stamps'): g(f"s_mov_b32 s{S['ST']+18}, {s('SPIN')}\ns_mov_b32 s{S['ST']+19}, 0")
    g(f"v_mov_b32 {T(4)}, {R(KB)}\nv_mov_b32 {T(5)}, {R(KB+2)}")
    for i in range(1,16): g(f"v_add_f32 {T(4)}, {T(4)}, {R(KB+4*i)}\nv_add_f32 {T(5)}, {T(5)}, {R(KB+4*i+2)}")
    for rg in (T(4),T(5)):
        g(f"s_nop 1\nv_mov_b32_dpp {T(6)}, {rg} row_ror:8 row_mask:0xf bank_mask:0xf\nv_add_f32 {rg}, {rg}, {T(6)}")
        xlane(g,rg,"v_add_f32",T(6),T(7))
    g(f"v_cvt_pk_bf16_f32 {T(4)}, {T(4)}, {T(5)}")
    srd(g,'SRDA','OUT',4*896*2)
    g(f"v_lshlrev_b32 {T(6)}, 2, {T(1)}")
    g(f"s_mul_i32 {s('T0')}, {s('BR')}, 448\ns_lshr_b32 {s('T1')}, {s('WL')}, 2\ns_lshl_b32 {s('T1')}, {s('T1')}, 4\ns_add_u32 {s('T0')}, {s('T0')}, {s('T1')}\ns_lshl_b32 {s('T0')}, {s('T0')}, 1")
    g(f"s_and_b32 {s('T1')}, {s('WL')}, 3\ns_mul_i32 {s('T1')}, {s('T1')}, {896*2}\ns_add_u32 {s('T0')}, {s('T0')}, {s('T1')}")
    g(f"s_mov_b64 exec, 0xff")
    g(f"buffer_store_dword {T(4)}, {T(6)}, {s('SRDA',4)}, {s('T0')} offen")
    g(f"s_cmp_lg_u32 {s('WL')}, 0\ns_cbranch_scc1 L_fin_{kn}")
    g(f"s_add_u32 {s('T0')}, {s('E')}, 1\nv_mov_b32 {T(8)}, {s('T0')}\ns_lshl_b32 {s('T1')}, {s('BR')}, 8\nv_mov_b32 {T(9)}, {s('T1')}\ns_mov_b64 exec, 1")
    g(f"buffer_store_dword {T(8)}, {T(9)}, {s('SRDW',4)}, 0 offen offset:{WS_E}")

def dbg_stamps(g):
    g("s_mov_b64 exec, -1\ns_waitcnt lgkmcnt(0)")
    g("s_load_dwordx2 s[46:47], s[0:1], 88\ns_waitcnt lgkmcnt(0)")
    g(f"s_mov_b32 {s('SRDA',1,0)}, s46\ns_mov_b32 {s('SRDA',1,1)}, s47\ns_mov_b32 {s('SRDA',1,2)}, 256\ns_mov_b32 {s('SRDA',1,3)}, 0x20000")
    g(f"v_mov_b32 {T(0)}, 0\ns_mov_b64 exec, 1")
    for i in range(8):
        g(f"v_mov_b32 {T(4)}, s{S['ST']+2*i}\nbuffer_atomic_umax {T(4)}, {T(0)}, {s('SRDA',4)}, 0 offen offset:{4*i} sc1\ns_nop 1")
    g(f"s_not_b32 {s('T0')}, s{S['ST']}\nv_mov_b32 {T(4)}, {s('T0')}\nbuffer_atomic_umax {T(4)}, {T(0)}, {s('SRDA',4)}, 0 offen offset:40 sc1")

def write_stamps(g, wave_sel):
    if not g.cfg.get('stamps'): return
    g("s_mov_b64 exec, -1\ns_waitcnt lgkmcnt(0)")
    g(f"s_mul_i32 {s('T0')}, s2, 160\ns_add_u32 {s('T0')}, {s('T0')}, {WS_STAMP+wave_sel*65536}\nv_mov_b32 {T(0)}, 0\ns_mov_b64 exec, 1")
    for i in range(0,20,4):
        for k in range(4): g(f"v_mov_b32 {T(4+k)}, s{S['ST']+i+k}")
        g(f"buffer_store_dwordx4 {T(4,4)}, {T(0)}, {s('SRDW',4)}, {s('T0')} offen offset:{i*4}\ns_nop 1")

def kernel(g, kn, sections):
    g.kn=kn
    g(f".text\n.globl {kn}\n.p2align 8\n.type {kn},@function\n{kn}:")
    if g.cfg.get('stamps'):
        for i in range(20): g(f"s_mov_b32 s{S['ST']+i}, 0")
    prologue(g)
    g(f"s_cmp_eq_u32 {s('WAVE')}, 4\ns_cbranch_scc1 L_cw_{kn}")
    st='stream' in sections; qp='qproj' in sections
    if st:
        stream_waves(g, qp)
    else:
        if qp:
            g.q=[]; issue_wq_dma(g); g.vm_wait('wq'); g("s_barrier")
        get_tag(g)
        if 'hop1' in sections: g("s_barrier")
    if 'hop1' in sections: hop1_proj(g)
    if g.cfg.get('stamps'):
        g.stamp(7)
        l=g.lab("Lst"); g(f"s_cmp_lg_u32 {s('WAVE')}, 0\ns_cbranch_scc1 L_end_{kn}")
        write_stamps(g,0)
    g(f"s_branch L_end_{kn}")
    g(f"L_cw_{kn}:")
    cw_init(g, do_cnt=qp)
    if qp: cw_qproj(g)
    else:
        if st: g("s_waitcnt lgkmcnt(0)\ns_barrier")
        get_tag(g)
    if st:
        cw_qrecv(g)
    if 'hop1' in sections: cw_wo_dma(g)
    if st and g.cfg.get('pretouch'): cw_pretouch(g)
    if st: cw_tickets(g)
    if st or 'hop1' in sections:
        g("s_waitcnt vmcnt(0) lgkmcnt(0)\ns_barrier")
    g.stamp(4)
    if 'hop1' in sections: hop1_gather(g)
    if 'hop2' in sections: hop2(g)
    g(f"L_fin_{kn}:")
    if g.cfg.get('stamps'):
        g.stamp(7)
        if g.cfg.get('dbgst'): dbg_stamps(g)
        else: write_stamps(g,1)
    g(f"L_end_{kn}:\ns_endpgm")
    g(f""".section .rodata,"a"
.p2align 6
.amdhsa_kernel {kn}
.amdhsa_next_free_vgpr 256
.amdhsa_next_free_sgpr 102
.amdhsa_accum_offset 256
.amdhsa_group_segment_fixed_size 0
.amdhsa_kernarg_size 104
.amdhsa_user_sgpr_count 2
.amdhsa_user_sgpr_kernarg_segment_ptr 1
.amdhsa_system_sgpr_workgroup_id_x 1
.end_amdhsa_kernel""")

HEADER=open(os.path.join(os.path.dirname(os.path.abspath(__file__)),"header.txt")).read()

def build(cfg, plan, path):
    g=Gen(cfg)
    for kn,sec in plan: kernel(g,kn,sec)
    hdr=HEADER
    if len(plan)==1: hdr+=f"; @launch grid=(256,1,1) block=(320,1,1) lds={LDS_TOTAL}\n"
    else:
        for kn,sec in plan: hdr+=f"; @launch kernel={kn} grid=(256,1,1) block=(320,1,1) lds={LDS_TOTAL}\n"
    src=hdr+'.amdgcn_target "amdgcn-amd-amdhsa--gfx950"\n'+"\n".join(g.L)+"\n"
    open(path,"w").write(src)
    return src

def assemble(path_s, kernels):
    src=open(path_s).read()
    md=".amdgpu_metadata\n---\namdhsa.version: [1, 2]\namdhsa.kernels:\n"
    for k in kernels:
        md+=f"""  - .name: {k}
    .symbol: {k}.kd
    .kernarg_segment_size: 104
    .kernarg_segment_align: 8
    .group_segment_fixed_size: 0
    .private_segment_fixed_size: 0
    .wavefront_size: 64
    .sgpr_count: 102
    .vgpr_count: 256
    .max_flat_workgroup_size: 320
    .args:
      - {{.name: kernargs, .size: 104, .offset: 0, .value_kind: by_value}}
"""
    md+="...\n.end_amdgpu_metadata\n"
    open(path_s+".h.s","w").write(src+md)
    co=path_s[:-2]+".co"
    r=subprocess.run(["clang","-x","assembler","-target","amdgcn-amd-amdhsa","-mcpu=gfx950",path_s+".h.s","-o",co],capture_output=True,text=True)
    if r.returncode: print(r.stderr[:3000]); raise SystemExit(1)
    return co

if __name__=="__main__":
    cfg=dict(NS=26,B=8,predrain=2,pol="nt")
    out=sys.argv[1] if len(sys.argv)>1 else "."
    plan=[("q_kernel",["qproj"]),("s_kernel",["stream"]),("h1_kernel",["hop1"]),("h2_kernel",["hop2"])]
    build(dict(cfg),plan,f"{out}/split.s"); assemble(f"{out}/split.s",[k for k,_ in plan])
    plan=[(NAME+"_kernel",["qproj","stream","hop1","hop2"])]
    build(dict(cfg),plan,f"{out}/fused.s"); assemble(f"{out}/fused.s",[k for k,_ in plan])
    print("ok")
```

```python
import sys, os, subprocess, struct

NAME="concat_heads__gqa_block_cached__gqa_block_cached__decode"
def f2u(f): return struct.unpack("<I",struct.pack("<f",f))[0]

WS_E    = 0
WS_CNT  = 4096
WS_QG   = 0x10000
WS_PG   = 0x90000
PGS     = 4608
WS_OG   = 0x200000
WS_USED = 0x580000
WS_STAMP= 512<<20
SLOT=8192
RING=4*4*SLOT
AUX=RING
MISC=AUX+28672
L_Q   = MISC
L_TK  = MISC+1024
L_REQ = MISC+1152
L_QF  = MISC+1168
LDS_TOTAL=163840
C_SCALE = 0.09016844005555896
END_TK=0xFFF
SPIN_MAX=400000

S=dict(WG=2, WAVE=3, BR=4, TP=5, MEM=6, C=7,
 X=8, K=10, V=12, WQ=14, WO=16, OUT=18, WS=20, TAG=22, E=23,
 SRDK=24, SRDV=28, SRDA=32, SRDW=36,
 OFF=40, OFF4=41, LB=42, T0=43, T1=44, T2=45, P0=46, P1=47,
 MASK=48, WBASE=64, TKI=65, MBX=66, SPIN=67, TEAM=68, B=69, HKV=70, WL=71,
 EX=72, ACT=74, ST=76, CS=96, T5=97, T6=98, T7=99, NUNIT=100)
def s(n,k=1,o=0):
    b=S[n]+o
    return f"s{b}" if k==1 else f"s[{b}:{b+k-1}]"
V=dict(TID=0, LANE=1, D=2, KA=6, VA=10, M=18, L=19, T=20, O=36, A=44, Q=60, KB=92, VB=92, SS=124, KB2=220, X0=220, QA=116, TM=252, NM=253, CT=160, KB3=188)
def v(n,i=0,k=1):
    b=V[n]+i
    return f"v{b}" if k==1 else f"v[{b}:{b+k-1}]"
def T(i,k=1): return v('T',i,k)
def R(b,k=1): return f"v{b}" if k==1 else f"v[{b}:{b+k-1}]"

class Gen:
    def __init__(self, cfg):
        self.cfg=cfg; self.L=[]; self.uid=0; self.q=[]
    def __call__(self,t):
        for l in t.split("\n"):
            l=l.strip()
            if l: self.L.append(("" if l.endswith(":") else "  ")+l)
    def lab(self,b="L"):
        self.uid+=1; return f"{b}_{self.kn}_{self.uid}"
    def c(self,t): self.L.append("  ; "+t)
    def vm_issue(self,tag,n): self.q.append([tag,n])
    def vm_wait(self,tag):
        idx=max(i for i,(t,n) in enumerate(self.q) if t==tag)
        n=sum(x[1] for x in self.q[idx+1:])
        assert n<=63
        self(f"s_waitcnt vmcnt({n})")
        self.q=self.q[idx+1:]
    def stamp(self,i):
        if self.cfg.get("stamps"):
            self(f"s_memrealtime s[{S['ST']+2*i}:{S['ST']+2*i+1}]")

def srd(g, name, ptr, size, off=None):
    if off is None:
        g(f"s_mov_b32 {s(name,1,0)}, {s(ptr,1,0)}\ns_mov_b32 {s(name,1,1)}, {s(ptr,1,1)}")
    else:
        g(f"s_add_u32 {s(name,1,0)}, {s(ptr,1,0)}, {off}\ns_addc_u32 {s(name,1,1)}, {s(ptr,1,1)}, 0")
    g(f"s_mov_b32 {s(name,1,2)}, {size}\ns_mov_b32 {s(name,1,3)}, 0x20000")

def prologue(g):
    g(f"s_cmp_ge_u32 s2, 256\ns_cbranch_scc1 L_end_{g.kn}")
    g.stamp(0)
    pm=g.cfg.get('perm',0)
    if pm:
        g(f"s_bfe_u32 {s('T0')}, s2, 0x50002\ns_and_b32 {s('T1')}, s2, 3\ns_and_b32 {s('T2')}, s2, 128")
        if pm in (1,3): g(f"s_add_u32 {s('T1')}, {s('T1')}, {s('T0')}\ns_and_b32 {s('T1')}, {s('T1')}, 3")
        if pm in (4,): g(f"s_lshr_b32 {s('T5')}, {s('T0')}, 1\ns_add_u32 {s('T1')}, {s('T1')}, {s('T5')}\ns_and_b32 {s('T1')}, {s('T1')}, 3")
        if pm in (2,3,4): g(f"s_lshr_b32 {s('T5')}, {s('T0')}, 1\ns_and_b32 {s('T0')}, {s('T0')}, 1\ns_lshl_b32 {s('T0')}, {s('T0')}, 4\ns_or_b32 {s('T0')}, {s('T0')}, {s('T5')}")
        if pm==5:
            g(f"s_lshr_b32 {s('T5')}, {s('T0')}, 1\ns_and_b32 {s('T0')}, {s('T0')}, 1\ns_lshr_b32 {s('T2')}, {s('T2')}, 3\ns_or_b32 {s('T5')}, {s('T5')}, {s('T2')}\ns_lshl_b32 {s('T2')}, {s('T0')}, 7\ns_mov_b32 {s('T0')}, {s('T5')}")
        g(f"s_lshl_b32 {s('T0')}, {s('T0')}, 2\ns_or_b32 {s('T0')}, {s('T0')}, {s('T1')}\ns_or_b32 s2, {s('T0')}, {s('T2')}")
    g(f"s_lshr_b32 {s('BR')}, s2, 7\ns_mul_i32 {s('T0')}, {s('BR')}, 40")
    g(f"s_add_u32 s46, s0, {s('T0')}\ns_addc_u32 s47, s1, 0")
    g("s_load_dwordx8 s[8:15], s[46:47], 0\ns_load_dwordx2 s[16:17], s[46:47], 32")
    g("s_load_dwordx2 s[18:19], s[0:1], 80\ns_load_dwordx2 s[20:21], s[0:1], 96")
    g(f"v_and_b32 {v('LANE')}, 63, v0\nv_lshrrev_b32 {T(0)}, 6, v0")
    g(f"s_lshr_b32 {s('TEAM')}, s2, 2\ns_and_b32 {s('TP')}, {s('TEAM')}, 31")
    g(f"v_readfirstlane_b32 {s('WAVE')}, {T(0)}")
    g(f"s_and_b32 {s('MEM')}, s2, 3\ns_and_b32 {s('WL')}, s2, 127")
    g(f"s_lshr_b32 {s('B')}, {s('TP')}, 3\ns_and_b32 {s('HKV')}, {s('TP')}, 7")
    g(f"s_lshl_b32 {s('C')}, {s('MEM')}, 2\ns_add_u32 {s('C')}, {s('C')}, {s('B')}")
    g(f"s_mov_b32 {s('CS')}, {f2u(C_SCALE):#x}")
    g("s_waitcnt lgkmcnt(0)")
    g(f"s_lshl_b32 {s('T0')}, {s('BR')}, 8")
    g(f"s_add_u32 s46, {s('WS')}, {s('T0')}\ns_addc_u32 s47, {s('WS',1,1)}, 0")
    g(f"s_load_dword {s('E')}, s[46:47], {WS_E}")
    srd(g,'SRDW','WS', WS_USED if (not g.cfg.get('stamps') or g.cfg.get('dbgst')) else 0x30000000)

def get_tag(g):
    g("s_waitcnt lgkmcnt(0)")
    g(f"s_mul_i32 {s('TAG')}, {s('E')}, 0x9E3779B1\ns_add_u32 {s('TAG')}, {s('TAG')}, 0x7F4A7C15")

def issue_wq_dma_v2(g):
    g.c("wq slice DMA (7 x 1KB per wave): 224 rows x 128 B")
    srd(g,'SRDA','WQ',448*8192)
    L=v('LANE')
    g(f"v_lshrrev_b32 {T(0)}, 3, {L}\nv_lshlrev_b32 {T(0)}, 13, {T(0)}")
    g(f"v_and_b32 {T(1)}, 7, {L}\nv_lshl_add_u32 {T(0)}, {T(1)}, 4, {T(0)}")
    g(f"s_lshl_b32 {s('T0')}, {s('HKV')}, 10\ns_lshr_b32 {s('T1')}, {s('C')}, 1\ns_lshl_b32 {s('T1')}, {s('T1')}, 7\ns_add_u32 {s('T0')}, {s('T0')}, {s('T1')}")
    g(f"s_and_b32 {s('T1')}, {s('C')}, 1\ns_mul_i32 {s('T1')}, {s('T1')}, {224*8192}\ns_add_u32 {s('T0')}, {s('T0')}, {s('T1')}")
    g(f"s_mul_i32 {s('T1')}, {s('WAVE')}, {56*8192}\ns_add_u32 {s('T0')}, {s('T0')}, {s('T1')}")
    g(f"s_mul_i32 {s('T1')}, {s('WAVE')}, {7*1024}\ns_add_u32 {s('T1')}, {s('T1')}, {AUX}")
    for n in range(7):
        g(f"s_mov_b32 m0, {s('T1')}\ns_add_u32 {s('T1')}, {s('T1')}, 1024")
        g(f"buffer_load_dwordx4 {T(0)}, {s('SRDA',4)}, {s('T0')} offen {g.cfg.get('wqpol','nt')} lds")
        g(f"s_add_u32 {s('T0')}, {s('T0')}, 65536")
    g.vm_issue('wq',7)

def stream_setup1(g):
    g.c("stream setup 1")
    g(f"s_lshl_b32 {s('T0')}, {s('TP')}, 22")
    srd(g,'SRDK','K',4<<20,s('T0')); srd(g,'SRDV','V',4<<20,s('T0'))
    L=v('LANE')
    g(f"v_lshrrev_b32 {T(2)}, 5, {L}\nv_and_b32 {T(3)}, 31, {L}")
    for t in range(4):
        g(f"v_add_u32 {T(4)}, {2*t}, {T(2)}\nv_lshlrev_b32 {T(4)}, 1, {T(4)}\nv_xor_b32 {T(4)}, {T(4)}, {T(3)}")
        g(f"v_lshlrev_b32 {T(4)}, 4, {T(4)}\nv_lshl_add_u32 {v('D',t)}, {T(2)}, 9, {T(4)}")
    g(f"s_lshl_b32 {s('LB')}, {s('WAVE')}, 15")
    NS=g.cfg['NS']
    if g.cfg.get('lay'):
        g(f"s_lshl_b32 {s('WBASE')}, {s('MEM')}, 7\ns_add_u32 {s('WBASE')}, {s('WBASE')}, {s('WAVE')}\ns_lshl_b32 {s('WBASE')}, {s('WBASE')}, 13")
    else:
        g(f"s_mul_i32 {s('WBASE')}, {s('MEM')}, {NS*4}\ns_add_u32 {s('WBASE')}, {s('WBASE')}, {s('WAVE')}\ns_lshl_b32 {s('WBASE')}, {s('WBASE')}, 13")
    if g.cfg.get('rotb'):
        g(f"s_mul_i32 {s('T7')}, {s('BR')}, {g.cfg['rotb']*32768}")
    elif g.cfg.get('rot'):
        g(f"s_mul_i32 {s('T7')}, s2, {g.cfg['rot']}\ns_and_b32 {s('T7')}, {s('T7')}, 0xfff")
        g(f"s_mul_i32 {s('T2')}, {s('T7')}, {(65536+NS-1)//NS}\ns_lshr_b32 {s('T2')}, {s('T2')}, 16\ns_mul_i32 {s('T2')}, {s('T2')}, {NS}\ns_sub_i32 {s('T7')}, {s('T7')}, {s('T2')}")
        g(f"s_cmp_lt_i32 {s('T7')}, 0\ns_cselect_b32 {s('T2')}, {NS}, 0\ns_add_u32 {s('T7')}, {s('T7')}, {s('T2')}\ns_lshl_b32 {s('T7')}, {s('T7')}, 15")

def stream_setup2(g):
    g.c("stream setup 2")
    L=v('LANE')
    g(f"v_and_b32 {T(0)}, 15, {L}\nv_lshrrev_b32 {T(1)}, 4, {L}")
    g(f"v_and_b32 {T(2)}, 1, {T(0)}\nv_lshlrev_b32 {T(2)}, 1, {T(2)}\nv_xor_b32 {T(2)}, {T(2)}, {T(1)}\nv_lshlrev_b32 {T(2)}, 4, {T(2)}")
    g(f"v_bfe_u32 {T(3)}, {T(0)}, 1, 2\nv_lshlrev_b32 {T(3)}, 6, {T(3)}")
    g(f"v_lshl_add_u32 {T(2)}, {T(0)}, 9, {T(2)}\nv_add_u32 {T(2)}, {T(2)}, {T(3)}")
    for sg in range(4):
        g(f"v_xor_b32 {v('KA',sg)}, {sg*64}, {T(2)}\nv_add_u32 {v('KA',sg)}, {s('LB')}, {v('KA',sg)}")
    g(f"v_lshrrev_b32 {T(2)}, 2, {T(0)}\nv_and_b32 {T(3)}, 3, {T(0)}\nv_lshl_add_u32 {T(2)}, {T(1)}, 2, {T(2)}")
    g(f"v_and_b32 {T(4)}, 7, {T(2)}\nv_lshlrev_b32 {T(4)}, 5, {T(4)}\nv_lshl_add_u32 {T(4)}, {T(2)}, 9, {T(4)}\nv_lshl_add_u32 {T(4)}, {T(3)}, 3, {T(4)}")
    for d in range(8):
        g(f"v_xor_b32 {v('VA',d)}, {d*32}, {T(4)}\nv_add_u32 {v('VA',d)}, {s('LB')}, {v('VA',d)}")
    for t8 in range(8):
        m=(3<<(2*t8))*0x00010001
        g(f"s_mov_b32 {s('MASK',1,2*t8)}, {m:#x}\ns_mov_b32 {s('MASK',1,2*t8+1)}, {m:#x}")
    g(f"v_mov_b32 {v('M')}, {f2u(-1e30):#x}\nv_mov_b32 {v('L')}, 0")
    for i in range(8): g(f"v_mov_b32 {v('O',i)}, 0")

def dma_list(slot, kv, pol):
    sr=s('SRDK',4) if kv==0 else s('SRDV',4)
    out=[]
    for t in range(8):
        pre=""
        if t%4==0: pre=f"s_add_u32 m0, {s('LB')}, {slot*SLOT+(t//4)*4096}\ns_nop 0\n"
        out.append(pre+f"buffer_load_dwordx4 {v('D',t%4)}, {sr}, {s('OFF') if t<4 else s('OFF4')} offen offset:{(t%4)*1024} {pol} lds")
    return out
def set_off_static(g, unit):
    if g.cfg.get('rot') or g.cfg.get('rotb'):
        NS=g.cfg['NS']
        g(f"s_add_u32 {s('OFF')}, {s('T7')}, {unit*4*8192}\ns_sub_u32 {s('OFF4')}, {s('OFF')}, {NS*32768}\ns_cmp_ge_u32 {s('OFF')}, {NS*32768}\ns_cselect_b32 {s('OFF')}, {s('OFF4')}, {s('OFF')}")
        g(f"s_add_u32 {s('OFF')}, {s('OFF')}, {s('WBASE')}\ns_add_u32 {s('OFF4')}, {s('OFF')}, 4096")
        return
    g(f"s_add_u32 {s('OFF')}, {s('WBASE')}, {unit*4*8192}\ns_add_u32 {s('OFF4')}, {s('OFF')}, 4096")
def read_k(g, slot, dst):
    for st in range(8):
        g(f"ds_read_b128 {v(dst,4*st,4)}, {v('KA',st&3)} offset:{slot*SLOT+(st>>2)*256}")
def qk_list(src, sidx):
    return [f"v_mfma_f32_16x16x32_bf16 {v('SS',4*sidx,4)}, {v(src,4*st,4)}, {v('Q',4*st,4)}, {'0' if st==0 else v('SS',4*sidx,4)}" for st in range(8)]
def interleave(g,a,b):
    for i in range(max(len(a),len(b))):
        if i<len(a): g(a[i])
        if i<len(b): g(b[i])
def xlane(g, reg, op, t0, t1):
    for sw in ("v_permlane16_swap_b32","v_permlane32_swap_b32"):
        g(f"v_mov_b32 {t0}, {reg}\nv_mov_b32 {t1}, {reg}\ns_nop 1\n{sw} {t0}, {t1}\ns_nop 1\n{op} {reg}, {t0}, {t1}")
def sm_round(g, t, first):
    r=[v('SS',4*t+i) for i in range(4)]
    for i in (0,2):
        tt=T(6+i//2)
        g(f"v_cvt_pk_bf16_f32 {tt}, {r[i]}, {r[i+1]}\nv_lshlrev_b32 {r[i]}, 16, {tt}\nv_and_b32 {r[i+1]}, 0xffff0000, {tt}")
    if first: g(f"v_max3_f32 {v('TM')}, {r[0]}, {r[1]}, {r[2]}\nv_max_f32 {v('TM')}, {v('TM')}, {r[3]}")
    else: g(f"v_max3_f32 {v('TM')}, {v('TM')}, {r[0]}, {r[1]}\nv_max3_f32 {v('TM')}, {v('TM')}, {r[2]}, {r[3]}")
def sm_stats(g):
    xlane(g,v('TM'),"v_max_f32",T(1),T(2))
    g(f"v_mul_f32 {T(0)}, {s('CS')}, {v('TM')}\nv_max_f32 {T(0)}, {T(0)}, {v('M')}")
    g(f"v_sub_f32 {T(1)}, {v('M')}, {T(0)}\nv_exp_f32 {T(1)}, {T(1)}\nv_mov_b32 {v('M')}, {T(0)}")
    g(f"v_mul_f32 {v('L')}, {v('L')}, {T(1)}")
    for i in range(8): g(f"v_mul_f32 {v('O',i)}, {v('O',i)}, {T(1)}")
def sm_p(g, t):
    r=[v('SS',4*t+i) for i in range(4)]
    for x in r: g(f"v_fma_f32 {x}, {x}, {s('CS')}, -{v('M')}")
    for x in r: g(f"v_exp_f32 {x}, {x}")
    g(f"s_nop 0\nv_add_f32 {T(4)}, {r[0]}, {r[1]}\nv_add_f32 {T(5)}, {r[2]}, {r[3]}\nv_cvt_pk_bf16_f32 {r[0]}, {r[0]}, {r[1]}\nv_cvt_pk_bf16_f32 {r[1]}, {r[2]}, {r[3]}")
    g(f"v_add_f32 {T(4)}, {T(4)}, {T(5)}\nv_add_f32 {v('L')}, {v('L')}, {T(4)}")
def read_v(g, slot):
    for db in range(16):
        g(f"ds_read_b64_tr_b16 {v('VB',2*db,2)}, {v('VA',db&7)} offset:{slot*SLOT+(db>>3)*256}")
def mask_p(g, sidx):
    for t8 in range(8):
        for r in range(2):
            g(f"v_cndmask_b32 {v('A',2*t8+r)}, 0, {v('SS',4*sidx+r)}, {s('MASK',2,2*t8)}")
def pv_list():
    return [f"v_mfma_f32_16x16x16_bf16 {v('O',4*h,4)}, {v('VB',2*(8*h+t8),2)}, {v('A',2*t8,2)}, {v('O',4*h,4)}" for t8 in range(8) for h in range(2)]

def stream_waves(g, fused_q):
    cfg=g.cfg; NS=cfg['NS']; B=cfg['B']; pol=cfg.get('pol','nt'); Dm=cfg.get('D',1); D=cfg.get('Dh',Dm)
    cur=[D,False]
    fold=cfg.get('fold',0)
    NSB=NS if fold else NS-2
    assert NSB%B==0
    g.q=[]
    kfirst=cfg.get('kfirst',0)
    if fused_q and not kfirst: issue_wq_dma(g)
    stream_setup1(g)
    seq=[]
    for b in range(NSB//B):
        for kv in (0,1):
            for i in range(B): seq.append((kv,b*B+i,i,B))
    if not fold:
        for n in (NSB,NSB+1):
            for kv in (0,1): seq.append((kv,n,0,1))
    def pace():
        n=8*(cur[0]-1)+(cfg.get('pextra',0) if cur[1] else 0)
        g(f"s_waitcnt vmcnt({n})")
        keep=[]; acc=0
        for x in reversed(g.q):
            if acc>=n: break
            keep.append(x); acc+=x[1]
        g.q=list(reversed(keep))
    def landed(tag): return all(t!=tag for t,_ in g.q)
    def issue(i, paced=True):
        if paced: pace()
        set_off_static(g,seq[i][1]); g.vm_issue(('t',i),8)
        return dma_list(i%4,seq[i][0],pol)
    for i in range(D):
        for x in issue(i,False): g(x)
    if fused_q and kfirst: issue_wq_dma(g)
    stream_setup2(g)
    if fused_q: g.vm_wait('wq')
    g("s_barrier")
    for i in range(D,4):
        for x in issue(i): g(x)
    get_tag(g)
    PD=min(cfg.get('predrain',2),B)
    bufs=['KB','KB2','KB3']
    for i in range(PD):
        if not landed(('t',i)): g.vm_wait(('t',i))
        read_k(g,i%4,bufs[i]); g("s_waitcnt lgkmcnt(0)")
        for x in issue(i+4): g(x)
    g.c("wait for q in LDS")
    lp=g.lab("Lq")
    g(f"v_mov_b32 {T(0)}, {L_QF}\ns_mov_b32 {s('SPIN')}, 0")
    g(f"{lp}:\nds_read_b32 {T(1)}, {T(0)}\ns_waitcnt lgkmcnt(0)\nv_readfirstlane_b32 {s('T0')}, {T(1)}")
    g(f"s_add_u32 {s('SPIN')}, {s('SPIN')}, 1\ns_cmp_gt_u32 {s('SPIN')}, {SPIN_MAX*8}\ns_cbranch_scc1 {lp}_x")
    g(f"s_cmp_eq_u32 {s('T0')}, 0\ns_cbranch_scc0 {lp}_x\ns_sleep 1\ns_branch {lp}\n{lp}_x:")
    g.stamp(1)
    cur[0]=Dm; cur[1]=True
    L=v('LANE')
    g(f"v_and_b32 {T(0)}, 1, {L}\nv_lshlrev_b32 {T(0)}, 9, {T(0)}\nv_lshrrev_b32 {T(1)}, 4, {L}\nv_lshl_add_u32 {T(0)}, {T(1)}, 4, {T(0)}\nv_add_u32 {T(0)}, {L_Q}, {T(0)}")
    for st in range(8): g(f"ds_read_b128 {v('Q',4*st,4)}, {T(0)} offset:{st*64}")
    g("s_waitcnt lgkmcnt(0)")
    for i in range(PD):
        for x in qk_list(bufs[i],i): g(x)
    assert PD<B
    g("s_nop 7")
    for i in range(PD-1): sm_round(g,i,i==0)
    PD_done=[PD-1]
    def do_tile(kv, slot, ib, bb, dlist, pacefn):
        if kv==0:
            read_k(g,slot,'KB')
            if ib>0 and ib>PD_done[0]: sm_round(g,ib-1,ib-1==0)
            g("s_waitcnt lgkmcnt(0)")
            if dlist: pacefn()
            for x in dlist: g(x)
            for x in qk_list('KB',ib): g(x)
            if ib==bb-1:
                g("s_nop 7")
                sm_round(g,ib,ib==0); sm_stats(g)
        else:
            read_v(g,slot); sm_p(g,ib); mask_p(g,ib); g("s_waitcnt lgkmcnt(0)")
            if dlist: pacefn()
            for x in dlist: g(x)
            for x in pv_list(): g(x)
    for i in range(PD,len(seq)-4):
        kv,u,ib,bb=seq[i]
        if not landed(('t',i)): g.vm_wait(('t',i))
        set_off_static(g,seq[i+4][1])
        def pf(i=i):
            pace(); g.vm_issue(('t',i+4),8)
        do_tile(kv,i%4,ib,bb,dma_list(i%4,seq[i+4][0],pol),pf)
        if kv==1: PD_done[0]=-1
    g.stamp(2)
    g.c("pool loop")
    g(f"s_mov_b32 {s('TKI')}, 0\ns_lshl_b32 {s('MBX')}, {s('WAVE')}, 5\ns_add_u32 {s('MBX')}, {s('MBX')}, {L_TK}")
    g(f"s_mov_b32 {s('NUNIT')}, {NS}")
    kn=g.kn
    DP=cfg.get('DP',Dm)
    pw=lambda: g(f"s_waitcnt vmcnt({8*(DP-1)+cfg.get('ppextra',0)})")
    def fetch_ticket(endlab):
        lp=g.lab("Ltk")
        g(f"s_and_b32 {s('T0')}, {s('TKI')}, 7\ns_lshl_b32 {s('T0')}, {s('T0')}, 2\ns_add_u32 {s('T0')}, {s('T0')}, {s('MBX')}\nv_mov_b32 {T(6)}, {s('T0')}")
        g(f"s_add_u32 {s('TKI')}, {s('TKI')}, 1\ns_mov_b32 {s('SPIN')}, 0")
        g(f"{lp}:\nds_read_b32 {T(7)}, {T(6)}\ns_waitcnt lgkmcnt(0)\nv_readfirstlane_b32 {s('T0')}, {T(7)}")
        g(f"s_add_u32 {s('SPIN')}, {s('SPIN')}, 1\ns_cmp_gt_u32 {s('SPIN')}, {SPIN_MAX*8}\ns_cbranch_scc1 {endlab}")
        g(f"s_lshr_b32 {s('T1')}, {s('T0')}, 12\ns_cmp_eq_u32 {s('T1')}, {s('TKI')}\ns_cbranch_scc0 {lp}")
        g(f"s_lshl_b32 {s('T1')}, {s('WAVE')}, 2\ns_add_u32 {s('T1')}, {s('T1')}, {L_REQ}\nv_mov_b32 {T(6)}, {s('T1')}\nv_mov_b32 {T(7)}, {s('TKI')}\nds_write_b32 {T(6)}, {T(7)}")
        g(f"s_and_b32 {s('T0')}, {s('T0')}, 0xfff\ns_cmp_eq_u32 {s('T0')}, {END_TK}\ns_cbranch_scc1 {endlab}")
        assert cfg.get('lay')==2
        g(f"s_and_b32 {s('T1')}, {s('T0')}, 3\ns_lshr_b32 {s('T0')}, {s('T0')}, 2")
        g(f"s_lshl_b32 {s('T1')}, {s('T1')}, 7\ns_add_u32 {s('T0')}, {s('T0')}, {s('T1')}\ns_add_u32 {s('T0')}, {s('T0')}, {NS*4}\ns_lshl_b32 {s('OFF')}, {s('T0')}, 13\ns_add_u32 {s('OFF4')}, {s('OFF')}, 4096")
    nl=len(seq)
    if fold:
        sl=[(nl-4+k)%4 for k in range(4)]
        assert sl==[0,1,2,3]
        ibs=[seq[nl-4+k][2] for k in range(4)]
        fetch_ticket(f"L_tailx0_{kn}")
        do_tile(1,0,ibs[0],B,dma_list(0,0,pol),pw)
        do_tile(1,1,ibs[1],B,dma_list(1,1,pol),pw)
        fetch_ticket(f"L_tailx1_{kn}")
        do_tile(1,2,ibs[2],B,dma_list(2,0,pol),pw)
        do_tile(1,3,ibs[3],B,dma_list(3,1,pol),pw)
    g(f"L_pool0_{kn}:")
    p0=0 if fold else NSB%2
    for par in (p0,1-p0):
        fetch_ticket(f"L_tail{par}_{kn}")
        g("s_waitcnt vmcnt(24)")
        do_tile(0,2*par,0,1,dma_list(2*par,0,pol),pw)
        g("s_waitcnt vmcnt(24)")
        do_tile(1,2*par+1,0,1,dma_list(2*par+1,1,pol),pw)
    g(f"s_branch L_pool0_{kn}")
    if fold:
        g(f"L_tailx0_{kn}:")
        g("s_waitcnt vmcnt(0)")
        for k in range(4): do_tile(1,k,ibs[k],B,[],None)
        g(f"s_branch L_sdone_{kn}")
        g(f"L_tailx1_{kn}:")
        g("s_waitcnt vmcnt(16)")
        do_tile(1,2,ibs[2],B,[],None); do_tile(1,3,ibs[3],B,[],None)
        g("s_waitcnt vmcnt(8)"); do_tile(0,0,0,1,[],None)
        g("s_waitcnt vmcnt(0)"); do_tile(1,1,0,1,[],None)
        g(f"s_branch L_sdone_{kn}")
    for par in (0,1):
        g(f"L_tail{par}_{kn}:")
        g("s_waitcnt vmcnt(24)"); do_tile(0,2*par,0,1,[],None)
        g("s_waitcnt vmcnt(16)"); do_tile(1,2*par+1,0,1,[],None)
        g("s_waitcnt vmcnt(8)");  do_tile(0,2*(1-par),0,1,[],None)
        g("s_waitcnt vmcnt(0)");  do_tile(1,2*(1-par)+1,0,1,[],None)
        if par==0: g(f"s_branch L_sdone_{kn}")
    g(f"L_sdone_{kn}:")
    g.stamp(3)
    g.c("wave partial -> LDS")
    xlane(g,v('L'),"v_add_f32",T(1),T(2))
    L=v('LANE')
    g(f"v_lshlrev_b32 {T(0)}, 4, {L}\nv_add_u32 {T(0)}, {s('LB')}, {T(0)}")
    g(f"v_and_b32 {T(1)}, 1, {L}\nv_lshlrev_b32 {T(1)}, 3, {T(1)}\nv_add_u32 {T(1)}, {s('LB')}, {T(1)}")
    g(f"v_mov_b32 {T(2)}, {v('M')}\nv_mov_b32 {T(3)}, {v('L')}")
    g("s_nop 4")
    g(f"ds_write_b128 {T(0)}, {v('O',0,4)}\nds_write_b128 {T(0)}, {v('O',4,4)} offset:1024\nds_write_b64 {T(1)}, {T(2,2)} offset:2048")
    g("s_waitcnt lgkmcnt(0)\ns_barrier")
    X=V['X0']; KB=V['KB']
    g(f"s_and_b32 {s('T0')}, {s('WAVE')}, 1\ns_lshl_b32 {s('T0')}, {s('T0')}, 10\ns_lshr_b32 {s('T1')}, {s('WAVE')}, 1")
    g(f"v_bfe_u32 {T(0)}, {L}, 1, 2\nv_lshlrev_b32 {T(0)}, 8, {T(0)}\nv_lshrrev_b32 {T(1)}, 3, {L}\nv_lshl_add_u32 {T(0)}, {T(1)}, 5, {T(0)}")
    g(f"v_and_b32 {T(1)}, 1, {L}\nv_lshl_add_u32 {T(0)}, {T(1)}, 3, {T(0)}")
    g(f"s_lshl_b32 {s('T2')}, {s('T1')}, 4\ns_add_u32 {s('T2')}, {s('T2')}, {s('T0')}\nv_add_u32 {T(0)}, {s('T2')}, {T(0)}\nv_add_u32 {T(2)}, 65536, {T(0)}")
    g(f"s_lshl_b32 {s('T2')}, {s('T1')}, 3\nv_mov_b32 {T(1)}, {s('T2')}\nv_add_u32 {T(3)}, 65536, {T(1)}")
    for w in range(4):
        g(f"ds_read_b64 {R(KB+2*w,2)}, {T(0) if w<2 else T(2)} offset:{(w&1)*32768}")
        g(f"ds_read_b64 {R(KB+8+2*w,2)}, {T(1) if w<2 else T(3)} offset:{(w&1)*32768+2048}")
    g(f"v_lshlrev_b32 {T(4)}, 4, {L}")
    g(f"s_mul_i32 {s('T5')}, s2, {PGS}\ns_add_u32 {s('T5')}, {s('T5')}, {WS_PG}\ns_lshl_b32 {s('T1')}, {s('T1')}, 11\ns_add_u32 {s('T1')}, {s('T1')}, {s('T0')}\ns_add_u32 {s('T1')}, {s('T1')}, {s('T5')}")
    g("s_waitcnt lgkmcnt(0)")
    m=[R(KB+8+2*w) for w in range(4)]; l=[R(KB+9+2*w) for w in range(4)]
    mx=R(X); lt=R(X+2)
    g(f"v_max3_f32 {mx}, {m[0]}, {m[1]}, {m[2]}\nv_max_f32 {mx}, {mx}, {m[3]}")
    for w in range(4): g(f"v_sub_f32 {m[w]}, {m[w]}, {mx}")
    for w in range(4): g(f"v_exp_f32 {m[w]}, {m[w]}")
    g(f"v_mov_b32 {R(X+5)}, {s('TAG')}\nv_mov_b32 {R(X+7)}, {s('TAG')}")
    for r in range(2):
        o=R(X+4+2*r)
        g(f"v_mul_f32 {o}, {m[0]}, {R(KB+r)}")
        for w in range(1,4): g(f"v_fma_f32 {o}, {m[w]}, {R(KB+2*w+r)}, {o}")
    g(f"buffer_store_dwordx4 {R(X+4,4)}, {T(4)}, {s('SRDW',4)}, {s('T1')} offen {g.cfg.get('stf','sc1')}")
    l2=g.lab("Lnost")
    g(f"s_and_b32 {s('T0')}, {s('WAVE')}, 1\ns_cmp_lg_u32 {s('T0')}, 0\ns_cbranch_scc1 {l2}")
    g(f"v_mul_f32 {lt}, {m[0]}, {l[0]}")
    for w in range(1,4): g(f"v_fma_f32 {lt}, {m[w]}, {l[w]}, {lt}")
    g(f"v_mov_b32 {R(X+1)}, {s('TAG')}\nv_mov_b32 {R(X+3)}, {s('TAG')}\nv_mov_b32 {T(3)}, 0")
    g(f"s_lshl_b32 {s('T0')}, {s('WAVE')}, 3\ns_add_u32 {s('T5')}, {s('T5')}, {s('T0')}\ns_add_u32 {s('T5')}, {s('T5')}, 4096\ns_mov_b64 {s('EX',2)}, exec\ns_mov_b64 exec, 1")
    g(f"buffer_store_dwordx4 {R(X,4)}, {T(3)}, {s('SRDW',4)}, {s('T5')} offen {g.cfg.get('stf','sc1')}")
    g(f"s_mov_b64 exec, {s('EX',2)}")
    g(f"{l2}:")
    g.stamp(6)

def hop1_gather(g):
    g.c("hop1 gather")
    L=v('LANE'); X=V['X0']; KB=V['KB']; VB=V['CT']
    g(f"v_lshrrev_b32 {T(0)}, 4, {L}\nv_and_b32 {T(1)}, 15, {L}")
    g(f"v_and_b32 {T(3)}, 3, {T(1)}\nv_lshrrev_b32 {T(4)}, 2, {T(1)}")
    g(f"v_lshlrev_b32 {T(3)}, 5, {T(3)}\nv_add_u32 {T(3)}, {T(3)}, {T(4)}\nv_mul_u32_u24 {T(3)}, {PGS}, {T(3)}")
    g(f"v_mov_b32 {T(5)}, {T(3)}\nv_lshl_add_u32 {T(3)}, {T(0)}, 6, {T(3)}")
    g(f"s_lshl_b32 {s('T0')}, {s('BR')}, 5\ns_add_u32 {s('T0')}, {s('T0')}, {s('HKV')}\ns_mul_i32 {s('T0')}, {s('T0')}, {4*PGS}\ns_add_u32 {s('T0')}, {s('T0')}, {WS_PG}")
    g(f"s_lshl_b32 {s('T1')}, {s('C')}, 8\ns_add_u32 {s('T1')}, {s('T1')}, {s('T0')}")
    g(f"s_lshr_b32 {s('T2')}, {s('C')}, 3\ns_lshl_b32 {s('T2')}, {s('T2')}, 4\ns_add_u32 {s('T2')}, {s('T2')}, {s('T0')}\ns_add_u32 {s('T2')}, {s('T2')}, 4096")
    lp=g.lab("Lh1")
    if g.cfg.get('h1delay'): g(f"s_sleep {g.cfg['h1delay']}")
    g(f"s_mov_b32 {s('SPIN')}, 0")
    g(f"{lp}:")
    for n in range(4):
        g(f"buffer_load_dwordx4 {R(KB+4*n,4)}, {T(3)}, {s('SRDW',4)}, {s('T1')} offen offset:{16*n} {g.cfg.get('ldf','sc1')}")
    g(f"buffer_load_dwordx4 {R(KB+16,4)}, {T(5)}, {s('SRDW',4)}, {s('T2')} offen {g.cfg.get('ldf','sc1')}")
    g("s_waitcnt vmcnt(0)")
    g(f"v_xor_b32 {T(6)}, {s('TAG')}, {R(KB+1)}")
    for n in range(1,10):
        g(f"v_xor_b32 {T(7)}, {s('TAG')}, {R(KB+1+2*n)}\nv_or_b32 {T(6)}, {T(6)}, {T(7)}")
    g(f"v_cmp_ne_u32 vcc, 0, {T(6)}\ns_add_u32 {s('SPIN')}, {s('SPIN')}, 1\ns_cmp_gt_u32 {s('SPIN')}, {SPIN_MAX}\ns_cbranch_scc1 {lp}_x")
    g(f"s_cbranch_vccz {lp}_x\ns_sleep {g.cfg.get('h1sleep',2)}\ns_branch {lp}\n{lp}_x:")
    g.stamp(5)
    if g.cfg.get('stamps'): g(f"s_waitcnt lgkmcnt(0)\ns_mov_b32 s{S['ST']+16}, {s('SPIN')}\ns_mov_b32 s{S['ST']+17}, 0")
    M=R(KB+16); Lr=R(KB+18)
    def ror_red(reg,op,t):
        for n in (8,4):
            g(f"s_nop 1\nv_mov_b32_dpp {t}, {reg} row_ror:{n} row_mask:0xf bank_mask:0xf\n{op} {reg}, {reg}, {t}")
    g(f"v_mov_b32 {T(6)}, {M}")
    ror_red(T(6),"v_max_f32",T(7))
    g(f"v_sub_f32 {T(6)}, {M}, {T(6)}\nv_exp_f32 {T(6)}, {T(6)}\ns_nop 0\nv_mul_f32 {T(8)}, {T(6)}, {Lr}")
    ror_red(T(8),"v_add_f32",T(7))
    g(f"v_rcp_f32 {T(8)}, {T(8)}\ns_nop 0\nv_mul_f32 {T(6)}, {T(6)}, {T(8)}")
    for e in range(8): g(f"v_mul_f32 {R(KB+2*e)}, {R(KB+2*e)}, {T(6)}")
    for n in (8,4):
        g("s_nop 1")
        for e in range(8): g(f"v_mov_b32_dpp {R(VB+e)}, {R(KB+2*e)} row_ror:{n} row_mask:0xf bank_mask:0xf")
        for e in range(8): g(f"v_add_f32 {R(KB+2*e)}, {R(KB+2*e)}, {R(VB+e)}")
    for e in range(4): g(f"v_cvt_pk_bf16_f32 {R(X+e)}, {R(KB+4*e)}, {R(KB+4*e+2)}")
    g(f"v_lshlrev_b32 {T(0)}, 4, {L}\nv_add_u32 {T(0)}, {L_Q}, {T(0)}\nds_write_b128 {T(0)}, {R(X,4)}")
    g("s_waitcnt lgkmcnt(0)\ns_barrier")

def hop1_proj(g):
    g.c("hop1 projection")
    L=v('LANE'); X=V['X0']; Q=V['Q']; SS=V['SS']; A0=V['A']
    g(f"v_lshrrev_b32 {T(0)}, 4, {L}\nv_and_b32 {T(1)}, 15, {L}\nv_lshrrev_b32 {T(2)}, 2, {T(1)}\nv_and_b32 {T(3)}, 3, {T(1)}")
    g(f"v_lshl_add_u32 {T(2)}, {T(0)}, 3, {T(2)}\nv_mul_u32_u24 {T(2)}, 896, {T(2)}\nv_lshl_add_u32 {T(2)}, {T(3)}, 3, {T(2)}")
    g(f"s_mul_i32 {s('T0')}, {s('WAVE')}, {7*32}\ns_add_u32 {s('T0')}, {s('T0')}, {AUX}\nv_add_u32 {T(2)}, {s('T0')}, {T(2)}")
    for n in range(7):
        g(f"ds_read_b64_tr_b16 {R(Q+4*n,2)}, {T(2)} offset:{n*32}")
        g(f"ds_read_b64_tr_b16 {R(Q+4*n+2,2)}, {T(2)} offset:{n*32+4*896}")
    g(f"s_mul_i32 {s('T0')}, {s('BR')}, 28\ns_mul_i32 {s('T1')}, {s('WAVE')}, 7\ns_add_u32 {s('T0')}, {s('T0')}, {s('T1')}\ns_lshl_b32 {s('T0')}, {s('T0')}, 7")
    g(f"s_lshl_b32 {s('T1')}, {s('HKV')}, 4\ns_add_u32 {s('T1')}, {s('T1')}, {s('C')}\ns_add_u32 {s('T0')}, {s('T0')}, {s('T1')}\ns_lshl_b32 {s('T0')}, {s('T0')}, 9\ns_add_u32 {s('T0')}, {s('T0')}, {WS_OG}")
    g(f"v_lshrrev_b32 {T(4)}, 3, {T(1)}\nv_lshlrev_b32 {T(4)}, 16, {T(4)}\nv_lshl_add_u32 {T(4)}, {T(3)}, 7, {T(4)}\nv_lshl_add_u32 {T(4)}, {T(0)}, 5, {T(4)}")
    g(f"v_bfe_u32 {T(5)}, {T(1)}, 2, 1\nv_lshl_add_u32 {T(4)}, {T(5)}, 4, {T(4)}")
    for i in range(8): g(f"v_mov_b32 {R(A0+2*i+1)}, {s('TAG')}")
    g(f"s_mov_b32 {s('MASK',1,0)}, 0xf0f0f0f0\ns_mov_b32 {s('MASK',1,1)}, 0xf0f0f0f0\ns_mov_b32 {s('MASK',1,2)}, 0xff00ff00\ns_mov_b32 {s('MASK',1,3)}, 0xff00ff00")
    g(f"v_lshlrev_b32 {T(0)}, 4, {L}\nv_add_u32 {T(0)}, {L_Q}, {T(0)}")
    g("s_waitcnt lgkmcnt(0)\ns_barrier")
    g.stamp(4)
    g(f"ds_read_b128 {R(X,4)}, {T(0)}\ns_waitcnt lgkmcnt(0)")
    for n in range(7):
        g(f"v_mfma_f32_16x16x32_bf16 {R(SS+4*n,4)}, {R(Q+4*n,4)}, {R(X,4)}, 0")
    g("s_nop 1")
    mh=s('MASK',2,0); mc=s('MASK',2,2)
    for pr in range(4):
        n0=2*pr; n1=2*pr+1
        base=A0+4*pr
        if n1<7:
            for e in range(2):
                g(f"v_cndmask_b32 {T(6)}, {R(SS+4*n0+e)}, {R(SS+4*n0+2+e)}, {mh}\nv_cndmask_b32 {T(7)}, {R(SS+4*n1+e)}, {R(SS+4*n1+2+e)}, {mh}\nv_cndmask_b32 {R(base+2*e)}, {T(6)}, {T(7)}, {mc}")
        else:
            g("s_nop 4")
            for e in range(2):
                g(f"v_cndmask_b32 {R(base+2*e)}, {R(SS+4*n0+e)}, {R(SS+4*n0+2+e)}, {mh}")
            g(f"s_mov_b64 {s('EX',2)}, exec\ns_mov_b32 exec_lo, 0x00ff00ff\ns_mov_b32 exec_hi, 0x00ff00ff")
        g(f"buffer_store_dwordx4 {R(base,4)}, {T(4)}, {s('SRDW',4)}, {s('T0')} offen {g.cfg.get('stf','sc1')}")
        g(f"s_add_u32 {s('T0')}, {s('T0')}, 131072")
    g(f"s_mov_b64 exec, {s('EX',2)}")
    g.stamp(5)

def cw_init(g, do_cnt):
    g.c("CW init")
    L=v('LANE')
    g(f"v_lshlrev_b32 {T(0)}, 2, {L}\nv_add_u32 {T(0)}, {L_TK}, {T(0)}\nv_mov_b32 {T(1)}, 0\nds_write_b32 {T(0)}, {T(1)}")
    if do_cnt:
        l=g.lab("Lnc")
        g(f"s_cmp_lg_u32 {s('MEM')}, 0\ns_cbranch_scc1 {l}")
        g(f"s_lshl_b32 {s('T0')}, {s('TEAM')}, 8\ns_add_u32 {s('T0')}, {s('T0')}, {WS_CNT}\nv_mov_b32 {T(2)}, 0")
        g(f"s_mov_b64 {s('EX',2)}, exec\ns_mov_b64 exec, 1")
        g(f"buffer_store_dword {T(1)}, {T(2)}, {s('SRDW',4)}, {s('T0')} offen sc1")
        g(f"s_mov_b64 exec, {s('EX',2)}\n{l}:")

def cw_qproj_v2(g):
    L=v('LANE'); XR=V['Q']
    g.c("x operand loads")
    srd(g,'SRDA','X',4*896)
    g(f"v_and_b32 {T(0)}, 3, {L}\nv_mul_u32_u24 {T(0)}, 896, {T(0)}\nv_lshrrev_b32 {T(1)}, 4, {L}\nv_lshl_add_u32 {T(0)}, {T(1)}, 4, {T(0)}")
    g(f"s_and_b32 {s('T0')}, {s('C')}, 1\ns_mul_i32 {s('T0')}, {s('T0')}, 448")
    for st in range(7):
        g(f"buffer_load_dwordx4 {R(XR+4*st,4)}, {T(0)}, {s('SRDA',4)}, {s('T0')} offen offset:{st*64} {g.cfg.get('xpol','nt')}")
    g("s_waitcnt lgkmcnt(0)\ns_barrier")
    g.stamp(1)
    g(f"v_and_b32 {T(2)}, 15, {L}\nv_lshrrev_b32 {T(3)}, 2, {T(2)}\nv_and_b32 {T(4)}, 3, {T(2)}")
    g(f"v_lshl_add_u32 {T(3)}, {T(1)}, 3, {T(3)}\nv_lshlrev_b32 {T(3)}, 7, {T(3)}\nv_lshl_add_u32 {T(3)}, {T(4)}, 3, {T(3)}\nv_add_u32 {T(3)}, {AUX}, {T(3)}")
    AB=V['KB']
    D=V['O']
    for cb in range(4):
        for st in range(7):
            g(f"ds_read_b64_tr_b16 {R(AB+28*cb+4*st,2)}, {T(3)} offset:{st*4096+cb*32}")
            g(f"ds_read_b64_tr_b16 {R(AB+28*cb+4*st+2,2)}, {T(3)} offset:{st*4096+cb*32+512}")
    g(f"v_lshlrev_b32 {T(5)}, 16, {T(4)}\nv_lshrrev_b32 {T(6)}, 3, {T(2)}\nv_lshl_add_u32 {T(5)}, {T(6)}, 7, {T(5)}\nv_lshl_add_u32 {T(5)}, {T(1)}, 5, {T(5)}\nv_bfe_u32 {T(6)}, {T(2)}, 2, 1\nv_lshl_add_u32 {T(5)}, {T(6)}, 4, {T(5)}")
    g(f"s_lshl_b32 {s('T0')}, {s('BR')}, 5\ns_add_u32 {s('T0')}, {s('T0')}, {s('HKV')}\ns_lshl_b32 {s('T0')}, {s('T0')}, 13\ns_add_u32 {s('T0')}, {s('T0')}, {WS_QG}")
    g(f"s_and_b32 {s('T1')}, {s('C')}, 1\ns_lshl_b32 {s('T1')}, {s('T1')}, 12\ns_add_u32 {s('T0')}, {s('T0')}, {s('T1')}\ns_lshr_b32 {s('T1')}, {s('C')}, 1\ns_lshl_b32 {s('T1')}, {s('T1')}, 9\ns_add_u32 {s('T0')}, {s('T0')}, {s('T1')}")
    g(f"s_mov_b32 {s('MASK',1,0)}, 0xf0f0f0f0\ns_mov_b32 {s('MASK',1,1)}, 0xf0f0f0f0\ns_mov_b32 {s('MASK',1,2)}, 0xff00ff00\ns_mov_b32 {s('MASK',1,3)}, 0xff00ff00")
    get_tag(g)
    g(f"v_mov_b32 {T(9)}, {s('TAG')}\nv_mov_b32 {T(11)}, {s('TAG')}\nv_mov_b32 {T(13)}, {s('TAG')}\nv_mov_b32 {T(15)}, {s('TAG')}")
    g("s_waitcnt vmcnt(0) lgkmcnt(0)")
    g.stamp(9)
    for st in range(7):
        for cb in range(4):
            g(f"v_mfma_f32_16x16x32_bf16 {R(D+4*cb,4)}, {R(AB+28*cb+4*st,4)}, {R(XR+4*st,4)}, {'0' if st==0 else R(D+4*cb,4)}")
    g("s_nop 7")
    mh=s('MASK',2,0); mc=s('MASK',2,2)
    for pr in range(2):
        n0=2*pr; n1=2*pr+1; base=V['T']+8+4*pr
        for e in range(2):
            g(f"v_cndmask_b32 {T(6)}, {R(D+4*n0+e)}, {R(D+4*n0+2+e)}, {mh}\nv_cndmask_b32 {T(7)}, {R(D+4*n1+e)}, {R(D+4*n1+2+e)}, {mh}\nv_cndmask_b32 {R(base+2*e)}, {T(6)}, {T(7)}, {mc}")
        g(f"buffer_store_dwordx4 {R(base,4)}, {T(5)}, {s('SRDW',4)}, {s('T0')} offen offset:{pr*256} sc1")
    g.stamp(2)

def cw_qrecv_v2(g):
    g.c("receive q")
    L=v('LANE'); KB=V['KB']
    g(f"v_lshlrev_b32 {T(0)}, 6, {L}")
    g(f"s_lshl_b32 {s('T0')}, {s('TEAM')}, 13\ns_add_u32 {s('T0')}, {s('T0')}, {WS_QG}\ns_add_u32 {s('T1')}, {s('T0')}, 4096")
    lp=g.lab("Lqr")
    if g.cfg.get('qdelay'): g(f"s_sleep {g.cfg['qdelay']}")
    g(f"s_mov_b32 {s('SPIN')}, 0\n{lp}:")
    for k in range(2):
        for n in range(4):
            g(f"buffer_load_dwordx4 {R(KB+16*k+4*n,4)}, {T(0)}, {s('SRDW',4)}, {s('T0') if k==0 else s('T1')} offen offset:{16*n} sc1")
    g("s_waitcnt vmcnt(0)")
    g(f"v_xor_b32 {T(1)}, {s('TAG')}, {R(KB+1)}")
    for n in range(1,16): g(f"v_xor_b32 {T(2)}, {s('TAG')}, {R(KB+1+2*n)}\nv_or_b32 {T(1)}, {T(1)}, {T(2)}")
    g(f"v_cmp_ne_u32 vcc, 0, {T(1)}\ns_add_u32 {s('SPIN')}, {s('SPIN')}, 1\ns_cmp_gt_u32 {s('SPIN')}, {SPIN_MAX}\ns_cbranch_scc1 {lp}_x")
    g(f"s_cbranch_vccz {lp}_x\ns_sleep {g.cfg.get('qsleep',2)}\ns_branch {lp}\n{lp}_x:")
    for e in range(8): g(f"v_add_f32 {R(KB+2*e)}, {R(KB+2*e)}, {R(KB+16+2*e)}")
    for e in range(4): g(f"v_cvt_pk_bf16_f32 {T(4+e)}, {R(KB+4*e)}, {R(KB+4*e+2)}")
    g(f"v_lshlrev_b32 {T(0)}, 4, {L}\nv_add_u32 {T(0)}, {L_Q}, {T(0)}\nds_write_b128 {T(0)}, {T(4,4)}")
    g("s_waitcnt lgkmcnt(0)")
    g(f"v_mov_b32 {T(0)}, {L_QF}\nv_mov_b32 {T(1)}, 1\nds_write_b32 {T(0)}, {T(1)}")
    g.stamp(3)

def issue_wq_dma_v1(g):
    g.c("wq slice DMA (7 x 1KB per wave): 448 rows x 64 B")
    srd(g,'SRDA','WQ',448*8192)
    L=v('LANE')
    g(f"v_lshrrev_b32 {T(0)}, 2, {L}\nv_lshlrev_b32 {T(0)}, 13, {T(0)}")
    g(f"v_and_b32 {T(1)}, 3, {L}\nv_lshl_add_u32 {T(0)}, {T(1)}, 4, {T(0)}")
    g(f"s_lshl_b32 {s('T0')}, {s('HKV')}, 10\ns_lshl_b32 {s('T1')}, {s('C')}, 6\ns_add_u32 {s('T0')}, {s('T0')}, {s('T1')}")
    g(f"s_mul_i32 {s('T1')}, {s('WAVE')}, {7*131072}\ns_add_u32 {s('T0')}, {s('T0')}, {s('T1')}")
    g(f"s_mul_i32 {s('T1')}, {s('WAVE')}, {7*1024}\ns_add_u32 {s('T1')}, {s('T1')}, {AUX}")
    for n in range(7):
        g(f"s_mov_b32 m0, {s('T1')}\ns_add_u32 {s('T1')}, {s('T1')}, 1024")
        g(f"buffer_load_dwordx4 {T(0)}, {s('SRDA',4)}, {s('T0')} offen {g.cfg.get('wqpol','nt')} lds")
        g(f"s_add_u32 {s('T0')}, {s('T0')}, 131072")
    g.vm_issue('wq',7)

def cw_qproj_v1(g):
    L=v('LANE'); XR=V['Q']
    g.c("x operand loads")
    srd(g,'SRDA','X',4*896)
    g(f"v_and_b32 {T(0)}, 3, {L}\nv_mul_u32_u24 {T(0)}, 896, {T(0)}\nv_lshrrev_b32 {T(1)}, 4, {L}\nv_lshl_add_u32 {T(0)}, {T(1)}, 4, {T(0)}")
    for st in range(14):
        g(f"buffer_load_dwordx4 {R(XR+4*st,4)}, {T(0)}, {s('SRDA',4)}, 0 offen offset:{st*64} {g.cfg.get('xpol','nt')}")
    g("s_waitcnt lgkmcnt(0)\ns_barrier")
    g.stamp(1)
    g(f"v_and_b32 {T(2)}, 15, {L}\nv_lshrrev_b32 {T(3)}, 2, {T(2)}\nv_and_b32 {T(4)}, 3, {T(2)}")
    g(f"v_lshl_add_u32 {T(3)}, {T(1)}, 3, {T(3)}\nv_lshlrev_b32 {T(3)}, 6, {T(3)}\nv_lshl_add_u32 {T(3)}, {T(4)}, 3, {T(3)}\nv_add_u32 {T(3)}, {AUX}, {T(3)}")
    AB=V['QA']
    D=V['O']
    for cb in range(2):
        for st in range(14):
            g(f"ds_read_b64_tr_b16 {R(AB+56*cb+4*st,2)}, {T(3)} offset:{st*2048+cb*32}")
            g(f"ds_read_b64_tr_b16 {R(AB+56*cb+4*st+2,2)}, {T(3)} offset:{st*2048+cb*32+256}")
    g(f"v_lshlrev_b32 {T(5)}, 16, {T(4)}\nv_bfe_u32 {T(6)}, {T(2)}, 2, 1\nv_lshl_add_u32 {T(5)}, {T(6)}, 6, {T(5)}\nv_lshl_add_u32 {T(5)}, {T(1)}, 4, {T(5)}")
    g(f"s_lshl_b32 {s('T0')}, {s('BR')}, 5\ns_add_u32 {s('T0')}, {s('T0')}, {s('HKV')}\ns_lshl_b32 {s('T0')}, {s('T0')}, 13\ns_add_u32 {s('T0')}, {s('T0')}, {WS_QG}")
    g(f"s_lshl_b32 {s('T1')}, {s('C')}, 7\ns_add_u32 {s('T0')}, {s('T0')}, {s('T1')}")
    g(f"s_mov_b32 {s('MASK',1,0)}, 0xf0f0f0f0\ns_mov_b32 {s('MASK',1,1)}, 0xf0f0f0f0")
    get_tag(g)
    g(f"v_mov_b32 {T(9)}, {s('TAG')}\nv_mov_b32 {T(11)}, {s('TAG')}")
    g("s_waitcnt vmcnt(0) lgkmcnt(0)")
    g.stamp(9)
    for st in range(14):
        for cb in range(2):
            g(f"v_mfma_f32_16x16x32_bf16 {R(D+4*cb,4)}, {R(AB+56*cb+4*st,4)}, {R(XR+4*st,4)}, {'0' if st==0 else R(D+4*cb,4)}")
    g("s_nop 7")
    mh=s('MASK',2,0)
    for cb in range(2):
        g(f"v_cvt_pk_bf16_f32 {T(12+2*cb)}, {R(D+4*cb)}, {R(D+4*cb+1)}\nv_cvt_pk_bf16_f32 {T(13+2*cb)}, {R(D+4*cb+2)}, {R(D+4*cb+3)}")
    g(f"v_cndmask_b32 {T(8)}, {T(12)}, {T(14)}, {mh}\nv_cndmask_b32 {T(10)}, {T(13)}, {T(15)}, {mh}")
    g(f"s_mov_b64 {s('EX',2)}, exec\ns_mov_b32 exec_lo, 0x00ff00ff\ns_mov_b32 exec_hi, 0x00ff00ff")
    g(f"buffer_store_dwordx4 {T(8,4)}, {T(5)}, {s('SRDW',4)}, {s('T0')} offen sc1")
    g(f"s_mov_b64 exec, {s('EX',2)}")
    g.stamp(2)

def cw_qrecv_v1(g):
    g.c("receive q")
    L=v('LANE'); KB=V['KB']
    g(f"v_lshlrev_b32 {T(0)}, 5, {L}")
    g(f"s_lshl_b32 {s('T0')}, {s('TEAM')}, 13\ns_add_u32 {s('T0')}, {s('T0')}, {WS_QG}")
    lp=g.lab("Lqr")
    if g.cfg.get('qdelay'): g(f"s_sleep {g.cfg['qdelay']}")
    g(f"s_mov_b32 {s('SPIN')}, 0\n{lp}:")
    g(f"buffer_load_dwordx4 {R(KB,4)}, {T(0)}, {s('SRDW',4)}, {s('T0')} offen sc1")
    g(f"buffer_load_dwordx4 {R(KB+4,4)}, {T(0)}, {s('SRDW',4)}, {s('T0')} offen offset:16 sc1")
    g("s_waitcnt vmcnt(0)")
    g(f"v_xor_b32 {T(1)}, {s('TAG')}, {R(KB+1)}")
    for n in range(1,4): g(f"v_xor_b32 {T(2)}, {s('TAG')}, {R(KB+1+2*n)}\nv_or_b32 {T(1)}, {T(1)}, {T(2)}")
    g(f"v_cmp_ne_u32 vcc, 0, {T(1)}\ns_add_u32 {s('SPIN')}, {s('SPIN')}, 1\ns_cmp_gt_u32 {s('SPIN')}, {SPIN_MAX}\ns_cbranch_scc1 {lp}_x")
    g(f"s_cbranch_vccz {lp}_x\ns_sleep {g.cfg.get('qsleep',2)}\ns_branch {lp}\n{lp}_x:")
    g(f"v_mov_b32 {T(4)}, {R(KB)}\nv_mov_b32 {T(5)}, {R(KB+2)}\nv_mov_b32 {T(6)}, {R(KB+4)}\nv_mov_b32 {T(7)}, {R(KB+6)}")
    g(f"v_lshlrev_b32 {T(0)}, 4, {L}\nv_add_u32 {T(0)}, {L_Q}, {T(0)}\nds_write_b128 {T(0)}, {T(4,4)}")
    g("s_waitcnt lgkmcnt(0)")
    g(f"v_mov_b32 {T(0)}, {L_QF}\nv_mov_b32 {T(1)}, 1\nds_write_b32 {T(0)}, {T(1)}")
    g.stamp(3)

def issue_wq_dma(g): (issue_wq_dma_v2 if g.cfg.get('qv')==2 else issue_wq_dma_v1)(g)
def cw_qproj(g): (cw_qproj_v2 if g.cfg.get('qv')==2 else cw_qproj_v1)(g)
def cw_qrecv(g): (cw_qrecv_v2 if g.cfg.get('qv')==2 else cw_qrecv_v1)(g)

def cw_wo_dma(g):
    g.c("wo slice DMA -> AUX")
    L=v('LANE')
    srd(g,'SRDA','WO',4096*896)
    g(f"v_lshlrev_b32 {T(0)}, 4, {L}")
    g(f"s_lshl_b32 {s('T0')}, {s('HKV')}, 9\ns_lshl_b32 {s('T1')}, {s('C')}, 5\ns_add_u32 {s('T0')}, {s('T0')}, {s('T1')}\ns_mul_i32 {s('T0')}, {s('T0')}, 896")
    g(f"s_mov_b32 {s('T1')}, {AUX}")
    for n in range(28):
        g(f"s_mov_b32 m0, {s('T1')}\ns_add_u32 {s('T1')}, {s('T1')}, 1024")
        g(f"buffer_load_dwordx4 {T(0)}, {s('SRDA',4)}, {s('T0')} offen nt lds")
        g(f"s_add_u32 {s('T0')}, {s('T0')}, 1024")

def cw_pretouch(g):
    g.c("pretouch")
    if g.cfg.get('ptstag'):
        l=g.lab("Lstag")
        g(f"s_and_b32 {s('T0')}, s2, 31\n{l}:\ns_sleep {g.cfg['ptstag']}\ns_sub_u32 {s('T0')}, {s('T0')}, 1\ns_cmp_ge_i32 {s('T0')}, 0\ns_cbranch_scc1 {l}")
    L=v('LANE'); mode=g.cfg.get('pretouch'); pp=g.cfg.get('ptpol','')
    if mode==3:
        g(f"s_mul_i32 {s('T5')}, s2, {PGS}\ns_add_u32 {s('T5')}, {s('T5')}, {WS_PG}")
        g(f"s_add_u32 s46, {s('WS')}, {s('T5')}\ns_addc_u32 s47, {s('WS',1,1)}, 0")
        for i in range(33): g(f"s_load_dword {s('T6')}, s[46:47], {i*128}")
        g(f"s_mul_i32 {s('T0')}, {s('BR')}, 28\ns_lshl_b32 {s('T0')}, {s('T0')}, 7")
        g(f"s_lshl_b32 {s('T1')}, {s('HKV')}, 4\ns_add_u32 {s('T1')}, {s('T1')}, {s('C')}\ns_add_u32 {s('T0')}, {s('T0')}, {s('T1')}\ns_lshl_b32 {s('T0')}, {s('T0')}, 9\ns_add_u32 {s('T0')}, {s('T0')}, {WS_OG}")
        for half in range(2):
            g(f"s_add_u32 s46, {s('WS')}, {s('T0')}\ns_addc_u32 s47, {s('WS',1,1)}, 0")
            for n in range(14):
                for q in range(4): g(f"s_load_dword {s('T6')}, s[46:47], {n*65536+q*128}")
            g(f"s_add_u32 {s('T0')}, {s('T0')}, {14*65536}")
        g("s_waitcnt lgkmcnt(0)")
        return
    g(f"s_not_b32 {s('T0')}, {s('TAG')}")
    for i in range(4): g(f"v_mov_b32 {T(4+i)}, {s('T0')}")
    g(f"v_lshlrev_b32 {T(0)}, 4, {L}")
    g(f"s_mul_i32 {s('T5')}, s2, {PGS}\ns_add_u32 {s('T5')}, {s('T5')}, {WS_PG}")
    KB=V['KB']
    def op(i,addr,so,off=0):
        if mode==1: g(f"buffer_store_dwordx4 {T(4,4)}, {addr}, {s('SRDW',4)}, {so} offen offset:{off} sc1")
        else: g(f"buffer_load_dwordx4 {R(KB+4*i,4)}, {addr}, {s('SRDW',4)}, {so} offen offset:{off} {pp}")
    for i in range(4): op(i,T(0),s('T5'),i*1024)
    g(f"s_add_u32 {s('T5')}, {s('T5')}, 4096\ns_mov_b64 exec, 3")
    op(4,T(0),s('T5'))
    g("s_mov_b64 exec, -1")
    g(f"v_lshrrev_b32 {T(1)}, 5, {L}\nv_lshlrev_b32 {T(1)}, 16, {T(1)}\nv_and_b32 {T(2)}, 31, {L}\nv_lshl_add_u32 {T(1)}, {T(2)}, 4, {T(1)}")
    g(f"s_mul_i32 {s('T0')}, {s('BR')}, 28\ns_lshl_b32 {s('T0')}, {s('T0')}, 7")
    g(f"s_lshl_b32 {s('T1')}, {s('HKV')}, 4\ns_add_u32 {s('T1')}, {s('T1')}, {s('C')}\ns_add_u32 {s('T0')}, {s('T0')}, {s('T1')}\ns_lshl_b32 {s('T0')}, {s('T0')}, 9\ns_add_u32 {s('T0')}, {s('T0')}, {WS_OG}")
    for i in range(14):
        op(5+i,T(1),s('T0')); g(f"s_add_u32 {s('T0')}, {s('T0')}, 131072")

def cw_tickets(g):
    g.c("ticket service")
    NS=g.cfg['NS']; POOL=(32-NS)*16; kn=g.kn; L=v('LANE')
    g(f"v_mov_b32 {T(0)}, 0")
    g(f"s_lshl_b32 {s('T0')}, {s('TEAM')}, 8\ns_add_u32 {s('T0')}, {s('T0')}, {WS_CNT}\nv_mov_b32 {T(1)}, {s('T0')}")
    g(f"v_lshlrev_b32 {T(2)}, 2, {L}\nv_add_u32 {T(2)}, {L_REQ}, {T(2)}")
    g(f"v_lshlrev_b32 {T(3)}, 5, {L}\nv_add_u32 {T(3)}, {L_TK}, {T(3)}")
    g(f"s_mov_b64 {s('ACT',2)}, 0xf\ns_mov_b32 {s('SPIN')}, 0")
    g(f"L_twl_{kn}:")
    g(f"s_mov_b64 exec, {s('ACT',2)}")
    g(f"s_add_u32 {s('SPIN')}, {s('SPIN')}, 1\ns_cmp_gt_u32 {s('SPIN')}, {SPIN_MAX*4}\ns_cbranch_scc1 L_twe_{kn}")
    g(f"ds_read_b32 {T(4)}, {T(2)}\ns_waitcnt lgkmcnt(0)\nv_add_u32 {T(4)}, 1, {T(4)}")
    g(f"v_cmp_lt_u32 vcc, {T(0)}, {T(4)}\ns_nop 1\ns_and_b64 exec, exec, vcc\ns_cbranch_execz L_tws_{kn}")
    g(f"v_mov_b32 {T(5)}, 1\nbuffer_atomic_add {T(5)}, {T(1)}, {s('SRDW',4)}, 0 offen sc0 sc1\ns_waitcnt vmcnt(0)")
    g(f"v_cmp_gt_u32 vcc, {POOL}, {T(5)}\nv_mov_b32 {T(6)}, {END_TK}\ns_nop 1\nv_cndmask_b32 {T(6)}, {T(6)}, {T(5)}, vcc")
    g(f"v_and_b32 {T(7)}, 7, {T(0)}\nv_lshl_add_u32 {T(7)}, {T(7)}, 2, {T(3)}\nv_add_u32 {T(0)}, 1, {T(0)}\nv_lshl_or_b32 {T(6)}, {T(0)}, 12, {T(6)}")
    g(f"ds_write_b32 {T(7)}, {T(6)}")
    g(f"v_cmp_le_u32 vcc, {POOL}, {T(5)}\ns_nop 1\ns_andn2_b64 {s('ACT',2)}, {s('ACT',2)}, vcc")
    g(f"s_cmp_eq_u64 {s('ACT',2)}, 0\ns_cbranch_scc1 L_twe_{kn}\ns_branch L_twl_{kn}")
    g(f"L_tws_{kn}:\ns_sleep 2\ns_branch L_twl_{kn}")
    g(f"L_twe_{kn}:\ns_mov_b64 exec, -1\ns_waitcnt vmcnt(0) lgkmcnt(0)")

def hop2(g):
    g.c("hop2")
    L=v('LANE'); KB=V['KB']; kn=g.kn
    g(f"s_cmp_ge_u32 {s('WL')}, 112\ns_cbranch_scc1 L_fin_{kn}")
    g(f"v_lshrrev_b32 {T(0)}, 3, {L}\nv_lshlrev_b32 {T(0)}, 9, {T(0)}\nv_and_b32 {T(1)}, 7, {L}\nv_lshl_add_u32 {T(0)}, {T(1)}, 4, {T(0)}")
    g(f"s_mul_i32 {s('T0')}, {s('BR')}, 28\ns_lshr_b32 {s('T1')}, {s('WL')}, 2\ns_add_u32 {s('T0')}, {s('T0')}, {s('T1')}\ns_lshl_b32 {s('T0')}, {s('T0')}, 16")
    g(f"s_and_b32 {s('T2')}, {s('WL')}, 3\ns_lshl_b32 {s('T2')}, {s('T2')}, 7\ns_add_u32 {s('T0')}, {s('T0')}, {s('T2')}\ns_add_u32 {s('T0')}, {s('T0')}, {WS_OG}")
    lp=g.lab("Lh2")
    if g.cfg.get('h2delay'): g(f"s_sleep {g.cfg['h2delay']}")
    g(f"s_mov_b32 {s('SPIN')}, 0\n{lp}:\ns_mov_b32 {s('T5')}, {s('T0')}")
    for i in range(16):
        g(f"buffer_load_dwordx4 {R(KB+4*i,4)}, {T(0)}, {s('SRDW',4)}, {s('T5')} offen sc1\ns_add_u32 {s('T5')}, {s('T5')}, 4096")
    g("s_waitcnt vmcnt(0)")
    g(f"v_xor_b32 {T(2)}, {s('TAG')}, {R(KB+1)}")
    for n in range(1,32): g(f"v_xor_b32 {T(3)}, {s('TAG')}, {R(KB+1+2*n)}\nv_or_b32 {T(2)}, {T(2)}, {T(3)}")
    g(f"v_cmp_ne_u32 vcc, 0, {T(2)}\ns_add_u32 {s('SPIN')}, {s('SPIN')}, 1\ns_cmp_gt_u32 {s('SPIN')}, {SPIN_MAX}\ns_cbranch_scc1 {lp}_x")
    g(f"s_cbranch_vccz {lp}_x\ns_sleep 2\ns_branch {lp}\n{lp}_x:")
    g.stamp(6)
    if g.cfg.get('stamps'): g(f"s_mov_b32 s{S['ST']+18}, {s('SPIN')}\ns_mov_b32 s{S['ST']+19}, 0")
    g(f"v_mov_b32 {T(4)}, {R(KB)}\nv_mov_b32 {T(5)}, {R(KB+2)}")
    for i in range(1,16): g(f"v_add_f32 {T(4)}, {T(4)}, {R(KB+4*i)}\nv_add_f32 {T(5)}, {T(5)}, {R(KB+4*i+2)}")
    for rg in (T(4),T(5)):
        g(f"s_nop 1\nv_mov_b32_dpp {T(6)}, {rg} row_ror:8 row_mask:0xf bank_mask:0xf\nv_add_f32 {rg}, {rg}, {T(6)}")
        xlane(g,rg,"v_add_f32",T(6),T(7))
    g(f"v_cvt_pk_bf16_f32 {T(4)}, {T(4)}, {T(5)}")
    srd(g,'SRDA','OUT',4*896*2)
    g(f"v_lshlrev_b32 {T(6)}, 2, {T(1)}")
    g(f"s_mul_i32 {s('T0')}, {s('BR')}, 448\ns_lshr_b32 {s('T1')}, {s('WL')}, 2\ns_lshl_b32 {s('T1')}, {s('T1')}, 4\ns_add_u32 {s('T0')}, {s('T0')}, {s('T1')}\ns_lshl_b32 {s('T0')}, {s('T0')}, 1")
    g(f"s_and_b32 {s('T1')}, {s('WL')}, 3\ns_mul_i32 {s('T1')}, {s('T1')}, {896*2}\ns_add_u32 {s('T0')}, {s('T0')}, {s('T1')}")
    g(f"s_mov_b64 exec, 0xff")
    g(f"buffer_store_dword {T(4)}, {T(6)}, {s('SRDA',4)}, {s('T0')} offen")
    g(f"s_cmp_lg_u32 {s('WL')}, 0\ns_cbranch_scc1 L_fin_{kn}")
    g(f"s_add_u32 {s('T0')}, {s('E')}, 1\nv_mov_b32 {T(8)}, {s('T0')}\ns_lshl_b32 {s('T1')}, {s('BR')}, 8\nv_mov_b32 {T(9)}, {s('T1')}\ns_mov_b64 exec, 1")
    g(f"buffer_store_dword {T(8)}, {T(9)}, {s('SRDW',4)}, 0 offen offset:{WS_E}")

def dbg_stamps(g):
    g("s_mov_b64 exec, -1\ns_waitcnt lgkmcnt(0)")
    g("s_load_dwordx2 s[46:47], s[0:1], 88\ns_waitcnt lgkmcnt(0)")
    g(f"s_mov_b32 {s('SRDA',1,0)}, s46\ns_mov_b32 {s('SRDA',1,1)}, s47\ns_mov_b32 {s('SRDA',1,2)}, 256\ns_mov_b32 {s('SRDA',1,3)}, 0x20000")
    g(f"v_mov_b32 {T(0)}, 0\ns_mov_b64 exec, 1")
    for i in range(8):
        g(f"v_mov_b32 {T(4)}, s{S['ST']+2*i}\nbuffer_atomic_umax {T(4)}, {T(0)}, {s('SRDA',4)}, 0 offen offset:{4*i} sc1\ns_nop 1")
    g(f"s_not_b32 {s('T0')}, s{S['ST']}\nv_mov_b32 {T(4)}, {s('T0')}\nbuffer_atomic_umax {T(4)}, {T(0)}, {s('SRDA',4)}, 0 offen offset:40 sc1")

def write_stamps(g, wave_sel):
    if not g.cfg.get('stamps'): return
    g("s_mov_b64 exec, -1\ns_waitcnt lgkmcnt(0)")
    g(f"s_mul_i32 {s('T0')}, s2, 160\ns_add_u32 {s('T0')}, {s('T0')}, {WS_STAMP+wave_sel*65536}\nv_mov_b32 {T(0)}, 0\ns_mov_b64 exec, 1")
    for i in range(0,20,4):
        for k in range(4): g(f"v_mov_b32 {T(4+k)}, s{S['ST']+i+k}")
        g(f"buffer_store_dwordx4 {T(4,4)}, {T(0)}, {s('SRDW',4)}, {s('T0')} offen offset:{i*4}\ns_nop 1")

def kernel(g, kn, sections):
    g.kn=kn
    g(f".text\n.globl {kn}\n.p2align 8\n.type {kn},@function\n{kn}:")
    if g.cfg.get('stamps'):
        for i in range(20): g(f"s_mov_b32 s{S['ST']+i}, 0")
    prologue(g)
    g(f"s_cmp_eq_u32 {s('WAVE')}, 4\ns_cbranch_scc1 L_cw_{kn}")
    st='stream' in sections; qp='qproj' in sections
    if st:
        stream_waves(g, qp)
    else:
        if qp:
            g.q=[]; issue_wq_dma(g); g.vm_wait('wq'); g("s_barrier")
        get_tag(g)
        if 'hop1' in sections: g("s_barrier")
    if 'hop1' in sections: hop1_proj(g)
    if g.cfg.get('stamps'):
        g.stamp(7)
        l=g.lab("Lst"); g(f"s_cmp_lg_u32 {s('WAVE')}, 0\ns_cbranch_scc1 L_end_{kn}")
        write_stamps(g,0)
    g(f"s_branch L_end_{kn}")
    g(f"L_cw_{kn}:")
    cw_init(g, do_cnt=qp)
    if qp: cw_qproj(g)
    else:
        if st: g("s_waitcnt lgkmcnt(0)\ns_barrier")
        get_tag(g)
    if st:
        cw_qrecv(g)
    if 'hop1' in sections: cw_wo_dma(g)
    if st and g.cfg.get('pretouch'): cw_pretouch(g)
    if st: cw_tickets(g)
    if st or 'hop1' in sections:
        g("s_waitcnt vmcnt(0) lgkmcnt(0)\ns_barrier")
    g.stamp(4)
    if 'hop1' in sections: hop1_gather(g)
    if 'hop2' in sections: hop2(g)
    g(f"L_fin_{kn}:")
    if g.cfg.get('stamps'):
        g.stamp(7)
        if g.cfg.get('dbgst'): dbg_stamps(g)
        else: write_stamps(g,1)
    g(f"L_end_{kn}:\ns_endpgm")
    g(f""".section .rodata,"a"
.p2align 6
.amdhsa_kernel {kn}
.amdhsa_next_free_vgpr 256
.amdhsa_next_free_sgpr 102
.amdhsa_accum_offset 256
.amdhsa_group_segment_fixed_size 0
.amdhsa_kernarg_size 104
.amdhsa_user_sgpr_count 2
.amdhsa_user_sgpr_kernarg_segment_ptr 1
.amdhsa_system_sgpr_workgroup_id_x 1
.end_amdhsa_kernel""")

HEADER=open(os.path.join(os.path.dirname(os.path.abspath(__file__)),"header.txt")).read()

def build(cfg, plan, path):
    g=Gen(cfg)
    for kn,sec in plan: kernel(g,kn,sec)
    hdr=HEADER
    if len(plan)==1: hdr+=f"; @launch grid=(256,1,1) block=(320,1,1) lds={LDS_TOTAL}\n"
    else:
        for kn,sec in plan: hdr+=f"; @launch kernel={kn} grid=(256,1,1) block=(320,1,1) lds={LDS_TOTAL}\n"
    src=hdr+'.amdgcn_target "amdgcn-amd-amdhsa--gfx950"\n'+"\n".join(g.L)+"\n"
    open(path,"w").write(src)
    return src

def assemble(path_s, kernels):
    src=open(path_s).read()
    md=".amdgpu_metadata\n---\namdhsa.version: [1, 2]\namdhsa.kernels:\n"
    for k in kernels:
        md+=f"""  - .name: {k}
    .symbol: {k}.kd
    .kernarg_segment_size: 104
    .kernarg_segment_align: 8
    .group_segment_fixed_size: 0
    .private_segment_fixed_size: 0
    .wavefront_size: 64
    .sgpr_count: 102
    .vgpr_count: 256
    .max_flat_workgroup_size: 320
    .args:
      - {{.name: kernargs, .size: 104, .offset: 0, .value_kind: by_value}}
"""
    md+="...\n.end_amdgpu_metadata\n"
    open(path_s+".h.s","w").write(src+md)
    co=path_s[:-2]+".co"
    r=subprocess.run(["clang","-x","assembler","-target","amdgcn-amd-amdhsa","-mcpu=gfx950",path_s+".h.s","-o",co],capture_output=True,text=True)
    if r.returncode: print(r.stderr[:3000]); raise SystemExit(1)
    return co

if __name__=="__main__":
    cfg=dict(NS=26,B=8,predrain=2,pol="nt")
    out=sys.argv[1] if len(sys.argv)>1 else "."
    plan=[("q_kernel",["qproj"]),("s_kernel",["stream"]),("h1_kernel",["hop1"]),("h2_kernel",["hop2"])]
    build(dict(cfg),plan,f"{out}/split.s"); assemble(f"{out}/split.s",[k for k,_ in plan])
    plan=[(NAME+"_kernel",["qproj","stream","hop1","hop2"])]
    build(dict(cfg),plan,f"{out}/fused.s"); assemble(f"{out}/fused.s",[k for k,_ in plan])
    print("ok")
```
